```python
import torch

def _softmax(x, axis=-1):
    return torch.softmax(x, dim=axis)
def _gelu(x):
    return torch.nn.functional.gelu(x, approximate="tanh")
def _silu(x):
    return torch.nn.functional.silu(x)
def _sigmoid(x):
    return torch.sigmoid(x)
def _layernorm(x, axis=-1, eps=1e-5):
    m = x.mean(dim=axis, keepdim=True)
    v = x.var(dim=axis, keepdim=True, unbiased=False)
    return (x - m) / torch.sqrt(v + eps)
def _scatter_add(tgt, idx, src, axis=0):
    return tgt.clone().index_add_(axis, idx, src)
def _segment_sum(src, seg, n):
    out = torch.zeros((n,) + src.shape[1:], dtype=src.dtype)
    return out.index_add_(0, seg, src)
def _pad(x, pw):
    flat = tuple(v for pair in reversed(pw) for v in pair)
    return torch.nn.functional.pad(x, flat)

kernel_name = 'interleave_layers__spectral_gfnet__linear_attn_block__prompt'

def setup_inputs():

    _w = (lambda a: (lambda t: t.to(torch.bfloat16) if t.is_floating_point() else t)(torch.as_tensor(a)))
    def _A_setup():
        B, S, D = 1, 2048, 640
        Df = D // 2 + 1
        return {
            "x": _w((lambda *s: torch.randn(*s, dtype=torch.bfloat16) * 0.05)(B, S, D)),
            "w_r": _w((lambda *s: torch.randn(*s, dtype=torch.bfloat16) * 0.4)(S, Df) * 0.02),
            "w_i": _w((lambda *s: torch.randn(*s, dtype=torch.bfloat16) * 0.4)(S, Df) * 0.02),
        }
    _A_in = _A_setup()

    def _B_setup():
        B, S, D = 1, 2048, 640
        return {
            "x": _w((lambda *s: torch.randn(*s, dtype=torch.bfloat16) * 0.05)(B, S, D)),
            "wqkv": _w((lambda *s: torch.randn(*s, dtype=torch.bfloat16) * 0.05)(D, 3 * D)),
            "wo": _w((lambda *s: torch.randn(*s, dtype=torch.bfloat16) * 0.05)(D, D)),
        }
    _B_in = _B_setup()

    return {
        "A_x": _A_in["x"],
        "A_w_r": _A_in["w_r"],
        "A_w_i": _A_in["w_i"],
        "B_x": _B_in["x"],
        "B_wqkv": _B_in["wqkv"],
        "B_wo": _B_in["wo"],
    }

def reference(A_x, A_w_r, A_w_i, B_x, B_wqkv, B_wo):
    def _A_ref(x, w_r, w_i):
        B, S, D = x.shape
        X = (lambda x, axes=(-2,-1): torch.fft.rfft2(x.float(), dim=axes))(x, axes=(-2, -1))
        W = w_r + 1j * w_i
        X = X * W
        y = (lambda x, s, axes=(-2,-1): torch.fft.irfft2(x, s=s, dim=axes).to(torch.bfloat16))(X, (S, D), axes=(-2, -1))
        return y

    def _B_ref(x, wqkv, wo):
        B, S, D = x.shape
        H = 32; Dh = D // H
        qkv = (lambda x, *d: x.permute(*d))((x @ wqkv).reshape(B, S, 3, H, Dh), 2, 0, 3, 1, 4)
        q, k, v = qkv[0], qkv[1], qkv[2]
        phi = lambda t: torch.where(t > 0, t + 1, torch.exp(t)) + 1e-6
        pq, pk = phi(q), phi(k)
        kv = torch.einsum("bhsd,bhse->bhde", pk, v)
        z = torch.einsum("bhsd->bhd", pk)
        num = torch.einsum("bhqd,bhde->bhqe", pq, kv)
        den = torch.einsum("bhqd,bhd->bhq", pq, z)[..., None] + 1e-6
        o = num / den
        return (lambda x, *d: x.permute(*d))(o, 0, 2, 1, 3).reshape(B, S, D) @ wo

    x = A_x
    x = x + _A_ref(_layernorm(x, axis=-1), A_w_r, A_w_i)
    x = x + _B_ref(_layernorm(x, axis=-1), B_wqkv, B_wo)
    x = x + _A_ref(_layernorm(x, axis=-1), A_w_r, A_w_i)
    x = x + _B_ref(_layernorm(x, axis=-1), B_wqkv, B_wo)
    return x
```

```python
import re
import struct

REG_RE = re.compile(r'^(-|abs\(|\|)?([vas])(\d+|\[(\d+):(\d+)\])\)?\|?$')


def parse_regs(op):
    op = op.strip()
    if op in ('vcc', 'exec', 'm0', 'scc'):
        return [(op, 0)]
    if op in ('vcc_lo', 'vcc_hi'):
        return [('vcc', 0)]
    if op in ('exec_lo', 'exec_hi'):
        return [('exec', 0)]
    m = REG_RE.match(op)
    if not m:
        return []
    k = m.group(2)
    if m.group(4) is not None:
        return [(k, i) for i in range(int(m.group(4)), int(m.group(5)) + 1)]
    return [(k, int(m.group(3)))]


def split_ops(s):
    out, depth, cur = [], 0, ''
    for ch in s:
        if ch in '[(':
            depth += 1
        elif ch in '])':
            depth -= 1
        if ch == ',' and depth == 0:
            out.append(cur.strip())
            cur = ''
        else:
            cur += ch
    if cur.strip():
        out.append(cur.strip())
    return out


TRANS = ('v_exp_f32', 'v_log_f32', 'v_rcp_f32', 'v_rsq_f32', 'v_sqrt_f32', 'v_sin_f32', 'v_cos_f32')


class Inst:
    def __init__(self, text):
        self.text = text
        t = text.split(';')[0].strip()
        self.label = t.endswith(':')
        parts = t.split(None, 1)
        self.op = parts[0] if parts else ''
        rest = parts[1] if len(parts) > 1 else ''
        ops = split_ops(rest)
        mods = ''
        if ops:
            toks = ops[-1].split(None, 1)
            ops[-1] = toks[0]
            mods = toks[1] if len(toks) > 1 else ''
        self.ops, self.mods = ops, mods
        op = self.op
        self.dst, self.src = [], []
        self.kind = 'other'
        R = [parse_regs(o) for o in ops]
        flat = lambda L: [r for x in L for r in x]
        if self.label or op == '':
            self.kind = 'label'
        elif op.startswith('v_mfma'):
            self.kind = 'mfma'
            self.dst = R[0]
            self.srcA, self.srcB, self.srcC = R[1], R[2], R[3]
            self.src = flat(R[1:])
            self.passes = 8 if '32x32' in op else (2 if '4x4x4' in op else 4)
        elif op.startswith('buffer_') or op.startswith('global_'):
            self.kind = 'vmem'
            lds = ' lds' in (' ' + mods) or '_lds_' in op
            self.ldsdma = lds
            if '_load' in op and not lds:
                self.dst = R[0]
                self.src = flat(R[1:])
                if 'd16' in op:
                    self.src += R[0]
            elif '_atomic' in op and ' sc0' in (' ' + mods):
                self.dst = R[0]
                self.src = flat(R)
            else:
                self.src = flat(R)
            if lds:
                self.src = self.src + [('m0', 0)]
            self.wide_store = ('_store_dwordx4' in op or '_store_dwordx3' in op)
            if self.wide_store:
                self.sdata = R[0] if op.startswith('buffer_') else R[1]
        elif op.startswith('ds_'):
            self.kind = 'ds'
            if op.startswith('ds_read') or op.startswith('ds_bpermute') or op.startswith('ds_swizzle') or op.startswith('ds_permute'):
                self.dst = R[0]
                self.src = flat(R[1:])
                if 'd16' in op:
                    self.src += R[0]
            else:
                self.src = flat(R)
        elif op.startswith('s_load') or op.startswith('s_memrealtime') or op.startswith('s_memtime') or op.startswith('s_buffer_load'):
            self.kind = 'smem'
            self.dst = R[0]
            self.src = flat(R[1:])
        elif op in ('s_waitcnt', 's_nop', 's_barrier', 's_endpgm', 's_setprio', 's_sleep') or op.startswith('s_cbranch') or op == 's_branch':
            self.kind = 'ctl'
        elif op.startswith('s_'):
            self.kind = 'salu'
            if op.startswith('s_cmp'):
                self.src = flat(R)
            else:
                self.dst = R[0]
                self.src = flat(R[1:])
                if 'saveexec' in op:
                    self.dst = self.dst + [('exec', 0)]
                if op in ('s_addk_i32', 's_mulk_i32'):
                    self.src += R[0]
        elif op.startswith('v_'):
            self.kind = 'valu'
            if op.startswith('v_permlane') and 'swap' in op:
                self.dst = flat(R[:2])
                self.src = flat(R[:2])
            elif '_co_' in op:
                self.dst = flat(R[:2])
                self.src = flat(R[2:])
            else:
                self.dst = R[0]
                self.src = flat(R[1:])
                if op.startswith('v_fmac') or op.startswith('v_dot2c') or op.startswith('v_pk_fmac') or 'dpp' in op:
                    self.src += R[0]
            self.trans = any(op.startswith(t) for t in TRANS)
            self.dot = op.startswith('v_dot')
            self.dpp = 'dpp' in op or 'row_' in mods or 'quad_perm' in mods
            self.perml = op.startswith('v_permlane')
            self.rdlane = op.startswith('v_readlane') or op.startswith('v_readfirstlane') or op.startswith('v_writelane')
        else:
            raise ValueError('unknown instruction: ' + text)
        self.dset, self.sset = set(self.dst), set(self.src)

    def states(self):
        if self.kind == 'label':
            return 0
        if self.op == 's_nop':
            return int(self.ops[0], 0) + 1
        return 1


def need_states(p, c):
    n = 0
    pk, ck = p.kind, c.kind
    if pk == 'valu':
        hit = p.dset & c.sset
        vhit = {r for r in hit if r[0] in 'va' and r[0] != 'vcc'}
        shit = {r for r in hit if r[0] in ('s', 'vcc')}
        if vhit:
            if ck == 'mfma':
                n = max(n, 3 if p.dot else 2)
            if p.trans:
                n = max(n, 1)
            if ck == 'valu':
                if c.perml or c.dpp:
                    n = max(n, 2)
                if c.rdlane:
                    n = max(n, 1)
            if p.dot and not (ck == 'valu' and c.op == p.op and c.dset == p.dset and not (p.dset & set(sum([parse_regs(o) for o in c.ops[1:3]], [])))):
                n = max(n, 3)
        if p.dot and (p.dset & c.dset) and not (ck == 'valu' and c.op == p.op):
            n = max(n, 3)
        if shit:
            if ck == 'valu':
                n = max(n, 4 if c.rdlane else 2)
            if ck == 'vmem':
                n = max(n, 5)
            if ck in ('salu', 'smem'):
                n = max(n, 1)
        if ('exec', 0) in p.dset:
            n = max(n, 5)
    if pk == 'mfma':
        big = {8: 12, 4: 8, 2: 5}[p.passes]
        if ck == 'mfma':
            if p.dset & (set(c.srcA) | set(c.srcB)):
                n = max(n, big)
            if p.dset & set(c.srcC):
                if not (c.srcC == p.dst and c.passes == p.passes):
                    n = max(n, {8: 10, 4: 6, 2: 4}[p.passes])
                elif p.passes == 2:
                    n = max(n, 2)
            elif p.dset & c.dset:
                n = max(n, big)
        elif ck in ('valu', 'vmem', 'ds'):
            if p.dset & (c.sset | c.dset):
                n = max(n, big)
            if set(p.srcC) & c.dset:
                n = max(n, {8: 7, 4: 3, 2: 1}[p.passes])
    if pk == 'salu' and ('m0', 0) in p.dset and ('m0', 0) in c.sset and ck == 'vmem':
        n = max(n, 1)
    if pk == 'vmem' and getattr(p, 'wide_store', False):
        if set(p.sdata) & c.dset:
            n = max(n, 2)
    return n


class Kern:
    def __init__(self):
        self.raw = []

    def __call__(self, text):
        for line in text.split('\n'):
            line = line.strip()
            if line and not line.startswith(';'):
                self.raw.append(Inst(line))

    def finish(self):
        out = []
        vm, lg = [], []
        maxvm = 0

        def apply_wait(i):
            nonlocal vm, lg
            m = re.search(r'vmcnt\((\d+)\)', i.text)
            if m:
                n = int(m.group(1))
                vm = vm[len(vm) - n:] if n < len(vm) else vm
                if n == 0:
                    vm = []
            m = re.search(r'lgkmcnt\((\d+)\)', i.text)
            if m:
                n = int(m.group(1))
                if n == 0:
                    lg = []
                elif not any(s for _, s in lg):
                    lg = lg[len(lg) - n:] if n < len(lg) else lg

        saved = {}
        dead = False
        for i in self.raw:
            if i.kind == 'label':
                name = i.text.split(':')[0].strip()
                out.append(i)
                sv = saved.get(name)
                if dead:
                    vm, lg = (list(sv[0]), list(sv[1])) if sv else ([], [])
                elif 'nojoinwait' in i.text:
                    assert not any(d for d, _ in vm + lg + sv[0] + sv[1]), 'pending loads at nojoinwait label'
                    vm, lg = [], []
                elif sv is not None and (sv[0] != vm or sv[1] != lg):
                    wi = Inst('s_waitcnt vmcnt(0) lgkmcnt(0)')
                    out.append(wi)
                    vm, lg = [], []
                dead = False
                continue
            if i.op.startswith('s_cbranch') or i.op == 's_branch':
                tgt = i.ops[0]
                if tgt in saved and (saved[tgt][0] != vm or saved[tgt][1] != lg):
                    wi = Inst('s_waitcnt vmcnt(0) lgkmcnt(0)')
                    out.append(wi)
                    vm, lg = [], []
                else:
                    saved[tgt] = (list(vm), list(lg))
                out.append(i)
                if i.op == 's_branch':
                    dead = True
                continue
            if i.op == 's_endpgm':
                out.append(i)
                dead = True
                continue
            if i.op == 's_waitcnt':
                apply_wait(i)
                out.append(i)
                continue
            touch = i.sset | i.dset
            nv = nl = None
            for k, (d, _) in enumerate(vm):
                if d & touch:
                    nv = len(vm) - 1 - k
            for k, (d, s) in enumerate(lg):
                if d & touch:
                    if i.kind == 'ds' and not s and not (d & (i.sset - i.dset)):
                        continue
                    nl = len(lg) - 1 - k
            if nl is not None and any(s for _, s in lg):
                nl = 0
            if nv is not None or nl is not None:
                w = 's_waitcnt'
                if nv is not None:
                    w += f' vmcnt({min(nv, 63)})'
                if nl is not None:
                    w += f' lgkmcnt({min(nl, 15)})'
                wi = Inst(w)
                apply_wait(wi)
                out.append(wi)
            out.append(i)
            if i.kind == 'vmem':
                vm.append((i.dset, False))
                maxvm = max(maxvm, len(vm))
                assert len(vm) <= 63, 'vmcnt overflow at: ' + i.text
            elif i.kind == 'ds':
                lg.append((i.dset, False))
            elif i.kind == 'smem':
                lg.append((i.dset, True))
        res = []
        for i in out:
            if i.kind not in ('label', 'ctl'):
                need = 0
                dist = 0
                for p in reversed(res):
                    if p.op in ('s_endpgm', 's_branch'):
                        break
                    if dist >= 20:
                        break
                    if p.kind not in ('label', 'ctl'):
                        n = need_states(p, i)
                        need = max(need, n - dist)
                    dist += p.states()
                while need > 0:
                    k = min(need, 16)
                    res.append(Inst(f's_nop {k - 1}'))
                    need -= k
            res.append(i)
        self.out = res
        return '\n'.join(('' if i.kind == 'label' else '  ') + i.text for i in res) + '\n'

    def max_regs(self):
        mv = ma = ms = -1
        for i in self.raw:
            for k, n in list(i.dset) + list(i.sset):
                if k == 'v':
                    mv = max(mv, n)
                elif k == 'a':
                    ma = max(ma, n)
                elif k == 's':
                    ms = max(ms, n)
        return mv + 1, ma + 1, ms + 1


def f2u(x):
    return struct.unpack('<I', struct.pack('<f', x))[0]


def fhex(x):
    return '0x%08x' % f2u(x)


def vr(b, n=1, k='v'):
    return f'{k}{b}' if n == 1 else f'{k}[{b}:{b + n - 1}]'


def ar(b, n=1):
    return vr(b, n, 'a')


def sr(b, n=1):
    return vr(b, n, 's')
```

```python
import sys
import math
import numpy as np
from asmlib import Kern, fhex, vr, ar, sr
import maps as M

DIAG = '--diag' in sys.argv
NAME = 'interleave_layers__spectral_gfnet__linear_attn_block__prompt'

TAB_T1 = 0
TAB_T2 = 6144
TAB_WQW = TAB_T2 + 40960
TAB_WQI = TAB_WQW + 1920 * 4
TAB_WOP = TAB_WQI + 640 * 4
TAB_SLOT = TAB_WOP + 640 * 4
TAB_BYTES = TAB_SLOT + 324 * 4

WS, AUX, TAB, AUX2 = 's[4:7]', 's[8:11]', 's[12:15]', 's[16:19]'


def srd_from_arg(k, base, argoff, nbytes):
    k(f's_load_dwordx2 s[{base}:{base + 1}], s[0:1], {argoff}')
    k(f's_mov_b32 s{base + 2}, {nbytes}')
    k(f's_mov_b32 s{base + 3}, 0x20000')


def srd_tab(k):
    k('s_getpc_b64 s[12:13]')
    k('s_add_u32 s12, s12, tabs@rel32@lo+4')
    k('s_addc_u32 s13, s13, tabs@rel32@hi+12')
    k(f's_mov_b32 s14, {TAB_BYTES}')
    k('s_mov_b32 s15, 0x20000')


def stamp_start(k, kidx):
    if DIAG:
        k('s_memrealtime s[80:81]')
        k(f's_mov_b32 s94, {M.STAMP + kidx * 131072}')
        for n in range(1, 7):
            k(f's_mov_b32 s{80 + 2 * n}, 0')


def stamp(k, n):
    if DIAG:
        k(f's_memrealtime s[{80 + 2 * n}:{81 + 2 * n}]')
        k('s_waitcnt lgkmcnt(0)' if False else 's_nop 0')


def stamp_end(k, kidx):
    if DIAG:
        k('s_waitcnt vmcnt(0) lgkmcnt(0)')
        k('s_memrealtime s[98:99]')
        k('s_waitcnt lgkmcnt(0)')
        for n in range(7):
            k(f'v_mov_b32 v{8 + n}, s{80 + 2 * n}')
        k('v_mov_b32 v15, s98')
        k('v_lshrrev_b32 v4, 6, v0')
        k('v_lshlrev_b32 v4, 5, v4')
        k('s_lshl_b32 s95, s2, 8')
        k(f's_add_u32 s95, s95, s94')
        k(f'buffer_store_dwordx4 v[8:11], v4, {WS}, s95 offen')
        k(f'buffer_store_dwordx4 v[12:15], v4, {WS}, s95 offen offset:16')


def endk(k, kidx):
    stamp_end(k, kidx)
    k('s_endpgm')


XP = 1296
X_IMG = 16 * XP
E_BYTES = 20480


def fft640_tables(k, vl16, sw):
    for f in range(4):
        k(f'buffer_load_dwordx4 {ar(4 * f, 4)}, {vl16}, {TAB}, 0 offen offset:{1024 * f}')
    k('s_movk_i32 s30, 0x1000')
    for f in range(4, 6):
        k(f'buffer_load_dwordx4 {ar(4 * f, 4)}, {vl16}, {TAB}, s30 offen offset:{1024 * (f - 4)}')
    k(f's_mul_i32 s30, {sw}, 10240')
    k(f's_add_u32 s30, s30, {TAB_T2}')
    for f in range(10):
        if f and f % 4 == 0:
            k('s_add_u32 s30, s30, 4096')
        k(f'buffer_load_dwordx4 {vr(176 + 4 * f, 4)}, {vl16}, {TAB}, s30 offen offset:{1024 * (f % 4)}')


B0, B1, D1, PK = 40, 56, 72, 120


def fft640_core_from_rows(k, vA, vB):
    R = 16
    stamp(k, 2)
    for i in range(8):
        k(f'ds_read_b64 {vr(R + 2 * i, 2)}, {vA} offset:{512 * (i // 4) + 32 * (i % 4)}')
    for i in range(2):
        k(f'ds_read_b64 {vr(R + 16 + 2 * i, 2)}, {vB} offset:{32 * i}')
    k('s_mov_b32 s31, 0x05040100')
    k('s_mov_b32 s32, 0x07060302')
    for kk in range(5):
        for q in range(4):
            dst = B0 + 4 * q + kk if kk < 4 else B1 + 4 * q
            sel = 's31' if q % 2 == 0 else 's32'
            k(f'v_perm_b32 v{dst}, v{R + 2 * (2 * kk + 1) + q // 2}, v{R + 2 * (2 * kk) + q // 2}, {sel}')


def fft640_zero_b1(k, keep):
    stamp(k, 1)
    for q in range(4):
        for x in range(keep, 4):
            k(f'v_mov_b32 v{B1 + 4 * q + x}, 0')


def fft640_stage1(k, vEw):
    stamp(k, 3)
    for q in range(4):
        for t in range(3):
            d = vr(D1 + 12 * q + 4 * t, 4)
            k(f'v_mfma_f32_16x16x32_bf16 {d}, {ar(8 * t, 4)}, {vr(B0 + 4 * q, 4)}, 0')
    for q in range(4):
        for t in range(3):
            d = vr(D1 + 12 * q + 4 * t, 4)
            k(f'v_mfma_f32_16x16x32_bf16 {d}, {ar(8 * t + 4, 4)}, {vr(B1 + 4 * q, 4)}, {d}')
    for i in range(5):
        for ri in range(2):
            sg = 2 * i + ri
            for qq in range(2):
                k(f'v_cvt_pk_bf16_f32 v{PK + 4 * i + 2 * ri + qq}, v{D1 + 12 * (2 * qq) + sg}, v{D1 + 12 * (2 * qq + 1) + sg}')
        k(f'ds_write_b128 {vEw}, {vr(PK + 4 * i, 4)} offset:{1024 * i}')
    k('s_waitcnt lgkmcnt(0)')
    k('s_barrier')


FR, D2 = 16, 72


def fft640_stage2(k, vEr, swapped):
    stamp(k, 4)
    for i in range(5):
        k(f'ds_read_b128 {vr(FR + 4 * i, 4)}, {vEr} offset:{1024 * i}')
    for i in range(5):
        for t in range(2):
            d = vr(D2 + 8 * i + 4 * t, 4)
            T = vr(176 + 8 * i + 4 * t, 4)
            if swapped:
                k(f'v_mfma_f32_16x16x32_bf16 {d}, {vr(FR + 4 * i, 4)}, {T}, 0')
            else:
                k(f'v_mfma_f32_16x16x32_bf16 {d}, {T}, {vr(FR + 4 * i, 4)}, 0')


def fft640_store_normal(k, vout, sbase, bstep):
    stamp(k, 5)
    for i in range(5):
        for x in range(4):
            k(f'v_cvt_pk_bf16_f32 v{PK + 4 * i + x}, v{D2 + 8 * i + 2 * x}, v{D2 + 8 * i + 2 * x + 1}')
        k(f'buffer_store_dwordx4 {vr(PK + 4 * i, 4)}, {vout}, {WS}, {sbase} offen')
        if i < 4:
            k(f's_add_u32 {sbase}, {sbase}, {bstep}')


K1_LDS = X_IMG + E_BYTES


def gen_k1():
    k = Kern()
    k('k1_kernel:')
    stamp_start(k, 0)
    k('s_cmp_ge_u32 s2, 256')
    k('s_cbranch_scc1 k1_exit')
    srd_from_arg(k, 4, 64, M.WS_USED)
    k('s_cmp_ge_u32 s2, 128')
    k('s_cbranch_scc1 k1_f')
    srd_from_arg(k, 8, 0, 2048 * 1280)
    srd_tab(k)
    k('v_and_b32 v1, 63, v0')
    k('v_lshrrev_b32 v2, 6, v0')
    k('v_readfirstlane_b32 s20, v2')
    k('v_lshrrev_b32 v3, 4, v0')
    k('v_and_b32 v4, 15, v0')
    k('s_lshl_b32 s21, s2, 4')
    k('s_mul_i32 s22, s21, 1280')
    k('v_mul_u32_u24 v5, 1280, v3')
    k('v_lshl_add_u32 v5, v4, 4, v5')
    k(f'v_mul_u32_u24 v6, {XP}, v3')
    k('v_lshl_add_u32 v6, v4, 4, v6')
    k('v_lshlrev_b32 v7, 4, v1')
    X = 140
    for i in range(5):
        k(f'buffer_load_dwordx4 {vr(X + 4 * i, 4)}, v5, {AUX}, s22 offen offset:{256 * i}')
    fft640_tables(k, 'v7', 's20')
    k('v_lshrrev_b32 v8, 4, v1')
    k(f'v_mul_u32_u24 v9, {XP}, v4')
    k('s_lshl_b32 s23, s20, 3')
    k('v_add_u32 v9, s23, v9')
    k('v_lshl_add_u32 v10, v8, 7, v9')
    k('v_lshl_add_u32 v11, v8, 6, v9')
    k('v_add_u32 v11, 1024, v11')
    k('v_mul_u32_u24 v12, 5120, v8')
    k('v_lshl_add_u32 v12, v4, 4, v12')
    k('s_lshl_b32 s23, s20, 8')
    k(f's_add_u32 s23, s23, {X_IMG}')
    k('v_add_u32 v12, s23, v12')
    k('s_mul_i32 s23, s20, 5120')
    k(f's_add_u32 s23, s23, {X_IMG}')
    k('v_add_u32 v13, s23, v7')
    k('v_lshlrev_b32 v14, 15, v8')
    k('v_add_u32 v15, s21, v4')
    k('v_lshl_add_u32 v14, v15, 4, v14')
    k(f's_mul_i32 s24, s20, {5 * 4 * 32768}')
    k(f's_add_u32 s24, s24, {M.XH0}')
    fft640_zero_b1(k, 1)
    k('v_mov_b32 v36, 0')
    k('v_mov_b32 v37, 0')
    k('v_mov_b32 v38, 0x3f803f80')
    for i in range(5):
        k(f'ds_write_b128 v6, {vr(X + 4 * i, 4)} offset:{256 * i}')
    k('s_waitcnt lgkmcnt(0)')
    k('s_barrier')
    fft640_core_from_rows(k, 'v10', 'v11')
    for i in range(20):
        k(f'v_dot2_f32_bf16 v36, v{X + i}, v{X + i}, v36')
        k(f'v_dot2_f32_bf16 v37, v{X + i}, v38, v37')
    fft640_stage1(k, 'v12')
    fft640_stage2(k, 'v13', False)
    for sh in (8, 4, 2, 1):
        k(f'v_add_f32_dpp v36, v36, v36 row_ror:{sh} row_mask:0xf bank_mask:0xf')
        k(f'v_add_f32_dpp v37, v37, v37 row_ror:{sh} row_mask:0xf bank_mask:0xf')
    k(f'v_mul_f32 v38, {fhex(-1.0 / 640)}, v37')
    k('v_fmac_f32 v36, v38, v37')
    k('v_add_u32 v39, s21, v3')
    k('v_lshlrev_b32 v39, 2, v39')
    k(f's_mov_b32 s25, {M.SSQ0}')
    k(f'buffer_store_dword v36, v39, {WS}, s25 offen')
    fft640_store_normal(k, 'v14', 's24', 4 * 32768)
    endk(k, 0)
    k('k1_f:')
    srd_from_arg(k, 8, 8, 2048 * 642)
    srd_from_arg(k, 16, 16, 2048 * 642)
    srd_tab(k)
    k('s_sub_u32 s20, s2, 128')
    k('s_lshr_b32 s21, s20, 3')
    k('s_and_b32 s22, s20, 7')
    k('s_lshl_b32 s23, s22, 8')
    k('s_lshl_b32 s24, s21, 2')
    k('s_add_u32 s23, s23, s24')
    k('s_mul_i32 s23, s23, 642')
    k('v_lshlrev_b32 v1, 4, v0')
    k('v_cmp_gt_u32 vcc, 161, v0')
    k('v_mov_b32 v2, 0x40000000')
    k('v_cndmask_b32 v2, v2, v1, vcc')
    CH = 2576
    for r in range(4):
        k(f'buffer_load_dwordx4 {vr(16 + 4 * r, 4)}, v2, {AUX}, s23 offen')
        k(f'buffer_load_dwordx4 {vr(32 + 4 * r, 4)}, v2, {AUX2}, s23 offen')
        if r < 3:
            k(f's_add_u32 s23, s23, {64 * 642}')
    k('v_lshrrev_b32 v3, 2, v0')
    k('v_and_b32 v4, 3, v0')
    k('v_lshlrev_b32 v5, 2, v3')
    k(f's_mov_b32 s25, {TAB_SLOT + 4}')
    for i in range(5):
        k(f'buffer_load_dword v{48 + i}, v5, {TAB}, s25 offen offset:{256 * i}')
    ZB = M.ZERO_END - M.ZERO_START
    per = (ZB + 127) // 128
    assert per <= 4096 and per % 16 == 0, per
    k('v_mov_b32 v8, 0')
    k('v_mov_b32 v9, 0')
    k('v_mov_b32 v10, 0')
    k('v_mov_b32 v11, 0')
    k(f'v_cmp_gt_u32 vcc, {per // 16}, v0')
    k('v_mov_b32 v6, 0x40000000')
    k('v_cndmask_b32 v6, v6, v1, vcc')
    k(f's_mul_i32 s26, s20, {per}')
    k(f's_add_u32 s26, s26, {M.ZERO_START}')
    k(f'buffer_store_dwordx4 v[8:11], v6, {WS}, s26 offen')
    k('v_cmp_gt_u32 vcc, 161, v0')
    k('s_and_saveexec_b64 s[28:29], vcc')
    for r in range(4):
        k(f'ds_write_b128 v1, {vr(16 + 4 * r, 4)} offset:{CH * r}')
        k(f'ds_write_b128 v1, {vr(32 + 4 * r, 4)} offset:{CH * (4 + r)}')
    k('s_mov_b64 exec, s[28:29]')
    k('v_mul_u32_u24 v12, 642, v4')
    k('v_lshl_add_u32 v12, v3, 1, v12')
    k('s_lshl_b32 s27, s22, 6')
    k('s_add_u32 s27, s27, s24')
    k('s_lshl_b32 s27, s27, 4')
    k(f's_add_u32 s27, s27, {M.WT}')
    k('s_waitcnt lgkmcnt(0)')
    k('s_barrier')
    for i in range(5):
        for r in range(4):
            k(f'ds_read_u16 v{64 + 4 * i + r}, v12 offset:{CH * r + 2 + 128 * i}')
            k(f'ds_read_u16 v{84 + 4 * i + r}, v12 offset:{CH * (4 + r) + 2 + 128 * i}')
    for i in range(5):
        for r in range(4):
            k(f'v_lshl_or_b32 v{64 + 4 * i + r}, v{84 + 4 * i + r}, 16, v{64 + 4 * i + r}')
        k(f'v_lshl_add_u32 v{48 + i}, v4, 4, v{48 + i}')
        k(f'buffer_store_dwordx4 {vr(64 + 4 * i, 4)}, v{48 + i}, {WS}, s27 offen')
    endk(k, 0)
    k('k1_exit:')
    k('s_endpgm')
    return k


def tables_asm():
    T1 = M.T1table().ravel().view(np.uint32)
    T2 = M.T2table().ravel().view(np.uint32)
    slot = np.zeros(324, np.uint32)
    for cs in range(320):
        slot[M.FREQ[cs]] = cs * 8192
    allw = np.concatenate([T1, T2, M.WQ_POS_W.astype(np.uint32), M.WQ_POS_I.astype(np.uint32), M.WO_POS.astype(np.uint32), slot])
    assert allw.size * 4 == TAB_BYTES, (allw.size * 4, TAB_BYTES)
    s = '.p2align 8\ntabs:\n'
    for i in range(0, allw.size, 8):
        s += '.long ' + ','.join('0x%x' % x for x in allw[i:i + 8]) + '\n'
    return s


def descriptor(name, k, nvgpr=None):
    mv, ma, ms = k.max_regs()
    acc = max(4, (mv + 3) // 4 * 4)
    nfv = acc + ma if ma > 0 else mv
    return f'''.p2align 6
.amdhsa_kernel {name}
  .amdhsa_next_free_vgpr {nfv}
  .amdhsa_next_free_sgpr {max(ms, 8)}
  .amdhsa_accum_offset {acc}
  .amdhsa_group_segment_fixed_size 0
  .amdhsa_kernarg_size 72
  .amdhsa_user_sgpr_count 2
  .amdhsa_user_sgpr_kernarg_segment_ptr 1
  .amdhsa_system_sgpr_workgroup_id_x 1
.end_amdhsa_kernel
'''


def build(launches, bodies):
    hdr = open('cdna_kernels/' + NAME + '.s.ref').read().split('; Override')[0]
    s = hdr
    for (kn, g, b, lds) in launches:
        s += f'; @launch kernel={kn} grid=({g},1,1) block=({b},1,1) lds={lds}\n'
    s += '.amdgcn_target "amdgcn-amd-amdhsa--gfx950"\n.text\n'
    desc = ''
    for (k, names) in bodies:
        txt = k.finish()
        for n in names:
            txt = txt.replace(f'{n}:\n', f'.globl {n}\n.p2align 8\n.type {n},@function\n{n}:\n')
            desc += descriptor(n, k)
        s += txt
    s += '.section .rodata,"a"\n' + desc + tables_asm()
    return s


if __name__ == '__main__':
    import gen_all
    gen_all.main()
```

```python
from gen import *

CM_IMG = 640 * 64 + 40 * 32
K2_LDS = max(32768, CM_IMG + 2 * E_BYTES, 2 * (X_IMG + E_BYTES))


def cmul(k, RE, IM, C, Sn, T0, T1, P, conj_tw, swap_out):
    for h in range(2):
        re, im, c, s = vr(RE + 2 * h, 2), vr(IM + 2 * h, 2), vr(C + 2 * h, 2), vr(Sn + 2 * h, 2)
        t0, t1 = vr(T0 + 2 * h, 2), vr(T1 + 2 * h, 2)
        neg = ' neg_lo:[1,0,0] neg_hi:[1,0,0]'
        k(f'v_pk_mul_f32 {t0}, {re}, {c}')
        k(f'v_pk_mul_f32 {t1}, {im}, {c}')
        k(f'v_pk_fma_f32 {t0}, {im}, {s}, {t0}' + ('' if conj_tw else neg))
        k(f'v_pk_fma_f32 {t1}, {re}, {s}, {t1}' + (neg if conj_tw else ''))
    for r in range(4):
        if swap_out:
            k(f'v_cvt_pk_bf16_f32 v{P + r}, v{T1 + r}, v{T0 + r}')
        else:
            k(f'v_cvt_pk_bf16_f32 v{P + r}, v{T0 + r}, v{T1 + r}')


def gen_k2():
    k = Kern()
    k('k2_kernel:')
    stamp_start(k, 1)
    k(f's_mov_b32 s40, {M.XH0}')
    k(f's_mov_b32 s41, {M.XH1}')
    k(f's_mov_b32 s42, {M.SSQ0}')
    srd_from_arg(k, 4, 64, M.WS_USED)
    k('s_cmp_lt_u32 s2, 160')
    k('s_cbranch_scc1 k2_col')
    k('s_cmp_lt_u32 s2, 220')
    k('s_cbranch_scc1 k2_b')
    k('s_cmp_lt_u32 s2, 240')
    k('s_cbranch_scc1 k2_c')
    k('s_endpgm')
    k('k5_kernel:')
    stamp_start(k, 4)
    k(f's_mov_b32 s40, {M.XH2}')
    k(f's_mov_b32 s41, {M.XH3}')
    k(f's_mov_b32 s42, {M.SSQ2}')
    srd_from_arg(k, 4, 64, M.WS_USED)
    k('s_cmp_lt_u32 s2, 160')
    k('s_cbranch_scc1 k2_col')
    k('s_cmp_lt_u32 s2, 180')
    k('s_cbranch_scc1 k2_i')
    k('s_endpgm')
    k('k2_col:')
    k('v_and_b32 v1, 63, v0')
    k('v_and_b32 v2, 15, v0')
    k('v_bfe_u32 v3, v0, 4, 2')
    k('v_lshrrev_b32 v4, 6, v0')
    k('v_readfirstlane_b32 s20, v4')
    k('s_and_b32 s21, s20, 3')
    k('s_lshr_b32 s22, s20, 2')
    k('s_and_b32 s23, s2, 7')
    k('s_lshr_b32 s24, s2, 4')
    k('s_lshl_b32 s24, s24, 3')
    k('s_add_u32 s23, s23, s24')
    k('s_bfe_u32 s24, s2, 0x10003')
    k('v_lshl_add_u32 v5, v3, 7, v2')
    k('s_lshl_b32 s25, s21, 9')
    k('s_lshl_b32 s26, s22, 4')
    k('s_add_u32 s25, s25, s26')
    k('v_add_u32 v5, s25, v5')
    k('v_lshlrev_b32 v6, 4, v5')
    k('v_lshlrev_b32 v7, 2, v5')
    k('s_lshl_b32 s26, s23, 15')
    k('s_lshl_b32 s27, s24, 3')
    k('s_add_u32 s26, s26, s27')
    k('s_add_u32 s27, s26, s41')
    k('s_add_u32 s26, s26, s40')
    k('s_lshl_b32 s28, s23, 2')
    k('s_lshl_b32 s29, s24, 1')
    k('s_add_u32 s28, s28, s29')
    k('s_add_u32 s28, s28, s22')
    k('s_lshl_b32 s28, s28, 13')
    k(f's_add_u32 s28, s28, {M.WT}')
    k('s_add_u32 s29, s28, 4096')
    k('s_lshl_b32 s30, s21, 4')
    k('v_add_u32 v28, s30, v2')
    k('v_lshl_add_u32 v29, v3, 6, v28')
    k('v_lshlrev_b32 v29, 4, v29')
    XR, SQ, WR = 8, 16, 20
    for r in range(4):
        k(f'buffer_load_dwordx2 {vr(XR + 2 * r, 2)}, v6, {WS}, s26 offen offset:{512 * r}')
    for r in range(4):
        k(f'buffer_load_dword v{SQ + r}, v7, {WS}, s42 offen offset:{128 * r}')
    k(f'buffer_load_dwordx4 {vr(WR, 4)}, v29, {WS}, s28 offen')
    k(f'buffer_load_dwordx4 {vr(WR + 4, 4)}, v29, {WS}, s29 offen')
    k('s_cmp_eq_u32 s2, 0')
    k('s_cselect_b32 s31, 0xffff, -1')
    C1R, C1I, C2R, C2I, T1C, T1S, T2C, T2S = 32, 48, 64, 80, 96, 104, 112, 120
    XF, DA, DB, P, TA, TB, WFR, WFI = 128, 144, 160, 176, 184, 192, 200, 208
    stamp(k, 1)
    k('v_cvt_f32_u32 v30, v28')
    k(f'v_mul_f32 v30, {fhex(1 / 64)}, v30')
    k('v_cvt_f32_u32 v31, v3')
    k('v_mul_f32 v31, 4.0, v31')
    k(f'v_mul_f32 v{TA}, v31, v30')
    for t in range(4):
        for r in range(4):
            i = 4 * t + r
            an, tc, ts = TA + 1 + (i % 2), TA + 3 + (i % 2), TA + 5 + (i % 2)
            if i == 0:
                k(f'v_mov_b32 v{an}, v{TA}')
            else:
                k(f'v_fmamk_f32 v{an}, v30, {fhex(16 * t + r)}, v{TA}')
            k(f'v_cos_f32 v{tc}, v{an}')
            k(f'v_sin_f32 v{ts}, v{an}')
            k(f'v_cvt_pk_bf16_f32 v{C1R + i}, v{tc}, v{ts}')
            k(f'v_cvt_pk_bf16_f32 v{C1I + i}, -v{ts}, v{tc}')
    k(f'v_mul_f32 v30, {fhex(1 / 32)}, v30')
    k(f'v_mul_f32 v{TA}, {fhex(1 / 32)}, v{TA}')
    for T in range(2):
        for r in range(4):
            i = 4 * T + r
            an = TA + 1 + (i % 2)
            if i == 0:
                k(f'v_mov_b32 v{an}, v{TA}')
            else:
                k(f'v_fmamk_f32 v{an}, v30, {fhex(16 * T + r)}, v{TA}')
            k(f'v_cos_f32 v{T1C + i}, v{an}')
            k(f'v_sin_f32 v{T1S + i}, v{an}')
    k('v_cvt_f32_u32 v30, v2')
    k(f'v_mul_f32 v30, {fhex(1 / 32)}, v30')
    k(f'v_mul_f32 v{TA}, v31, v30')
    k(f'v_and_b32 v{TB}, 1, v2')
    k('s_mov_b32 s32, 0x80008000')
    k(f'v_mul_lo_u32 v{TB}, v{TB}, s32')
    k(f'v_xor_b32 v{TB + 1}, s32, v{TB}')
    for r in range(4):
        an, tc, ts = TA + 1 + (r % 2), TA + 3 + (r % 2), TA + 5 + (r % 2)
        if r == 0:
            k(f'v_mov_b32 v{an}, v{TA}')
        else:
            k(f'v_fmamk_f32 v{an}, v30, {fhex(r)}, v{TA}')
        k(f'v_cos_f32 v{tc}, v{an}')
        k(f'v_sin_f32 v{ts}, v{an}')
        k(f'v_cvt_pk_bf16_f32 v{C2R + r}, v{tc}, v{ts}')
        k(f'v_cvt_pk_bf16_f32 v{C2I + r}, -v{ts}, v{tc}')
        for B in (C2R, C2I):
            k(f'v_xor_b32 v{B + 4 + r}, v{B + r}, v{TB}')
            if r % 2 == 0:
                k(f'v_mov_b32 v{B + 8 + r}, v{B + r}')
                k(f'v_xor_b32 v{B + 12 + r}, v{B + r}, v{TB}')
            else:
                k(f'v_xor_b32 v{B + 8 + r}, s32, v{B + r}')
                k(f'v_xor_b32 v{B + 12 + r}, v{B + r}, v{TB + 1}')
    k(f'v_cvt_f32_u32 v{TB + 2}, s30')
    k(f'v_add_f32 v31, v31, v{TB + 2}')
    k(f'v_mul_f32 v30, {fhex(1 / 64)}, v30')
    for Tm in range(2):
        if Tm == 1:
            k(f'v_add_f32 v30, {fhex(16 / 2048)}, v30')
        k(f'v_mul_f32 v{TA}, v31, v30')
        for r in range(4):
            i = 4 * Tm + r
            an = TA + 1 + (i % 2)
            if r == 0:
                k(f'v_mov_b32 v{an}, v{TA}')
            else:
                k(f'v_fmamk_f32 v{an}, v30, {fhex(r)}, v{TA}')
            k(f'v_cos_f32 v{T2C + i}, v{an}')
            k(f'v_sin_f32 v{T2S + i}, v{an}')
    k('v_lshlrev_b32 v4, 4, v1')
    k('s_lshl_b32 s33, s20, 10')
    k('v_add_u32 v5, s33, v4')
    k('s_lshl_b32 s33, s22, 13')
    k('v_add_u32 v7, s33, v4')
    k('s_lshl_b32 s34, s21, 10')
    k('s_add_u32 s34, s34, s33')
    k('v_add_u32 v28, s34, v4')
    k('s_lshl_b32 s33, s22, 12')
    k('v_add_u32 v29, s33, v4')
    stamp(k, 2)
    k(f's_mov_b32 s35, {fhex(2.0 ** 22 / 640)}')
    k(f'v_mov_b32 v30, {fhex(1e-5 * 2.0 ** 22)}')
    for r in range(4):
        k(f'v_fma_f32 v{SQ + r}, v{SQ + r}, s35, v30')
        k(f'v_rsq_f32 v{SQ + r}, v{SQ + r}')
    for c in range(2):
        for r in range(4):
            k(f'v_lshlrev_b32 v{XF + 8 * c + r}, 16, v{XR + 2 * r + c}')
            k(f'v_and_b32 v{XF + 8 * c + 4 + r}, 0xffff0000, v{XR + 2 * r + c}')
        for h in range(2):
            k(f'v_pk_mul_f32 {vr(TA + 2 * h, 2)}, {vr(XF + 8 * c + 2 * h, 2)}, {vr(SQ + 2 * h, 2)}')
            k(f'v_pk_mul_f32 {vr(TA + 4 + 2 * h, 2)}, {vr(XF + 8 * c + 4 + 2 * h, 2)}, {vr(SQ + 2 * h, 2)}')
        for r in range(4):
            k(f'v_cvt_pk_bf16_f32 v{P + 4 * c + r}, v{TA + r}, v{TA + 4 + r}')
            if c == 0:
                k(f'v_and_b32 v{P + r}, s31, v{P + r}')
        k(f'ds_write_b128 v5, {vr(P + 4 * c, 4)} offset:{8192 * c}')
    k('s_waitcnt lgkmcnt(0)')
    k('s_barrier')
    stamp(k, 3)
    for t in range(4):
        for T in range(2):
            k(f'ds_read_b128 {ar(16 * T + 4 * t, 4)}, v7 offset:{4096 * T + 1024 * t}')
    for i in range(8):
        k(f'v_lshlrev_b32 v{WFR + i}, 16, v{WR + i}')
        k(f'v_and_b32 v{WFI + i}, 0xffff0000, v{WR + i}')
    mf = 'v_mfma_f32_16x16x32_bf16'
    for t in range(4):
        for T in range(2):
            for (C, o) in ((C1R, 0), (C1I, 8)):
                d = vr(DA + o + 4 * T, 4)
                k(f'{mf} {d}, {ar(16 * T + 4 * t, 4)}, {vr(C + 4 * t, 4)}, {d if t else 0}')
    for T in range(2):
        cmul(k, DA + 4 * T, DA + 8 + 4 * T, T1C + 4 * T, T1S + 4 * T, TA, TA + 4, P + 4 * T, True, False)
    for T in range(2):
        for Tp in range(2):
            for (C, o) in ((C2R, 0), (C2I, 8)):
                d = vr(DB + o + 4 * Tp, 4)
                k(f'{mf} {d}, {vr(C + 8 * Tp + 4 * T, 4)}, {vr(P + 4 * T, 4)}, {d if T else 0}')
    for Tp in range(2):
        cmul(k, DB + 4 * Tp, DB + 8 + 4 * Tp, WFR + 4 * Tp, WFI + 4 * Tp, TA, TA + 4, TB + 4 * Tp, False, True)
    stamp(k, 4)
    for Tp in range(2):
        for Tm in range(2):
            for (C, o) in ((C2I, 0), (C2R, 8)):
                d = vr(DA + o + 4 * Tm, 4)
                k(f'{mf} {d}, {vr(TB + 4 * Tp, 4)}, {vr(C + 8 * Tm + 4 * Tp, 4)}, {d if Tp else 0}')
    for Tm in range(2):
        cmul(k, DA + 4 * Tm, DA + 8 + 4 * Tm, T2C + 4 * Tm, T2S + 4 * Tm, TA, TA + 4, P + 4 * Tm, False, True)
        k(f'ds_write_b128 v28, {vr(P + 4 * Tm, 4)} offset:{16384 + 4096 * Tm}')
    k('s_waitcnt lgkmcnt(0)')
    k('s_barrier')
    stamp(k, 5)
    for t in range(4):
        for c in range(2):
            k(f'ds_read_b128 {ar(16 * c + 4 * t, 4)}, v29 offset:{16384 + 8192 * c + 1024 * t}')
    for t in range(4):
        for c in range(2):
            for (C, o) in ((C1I, 0), (C1R, 4)):
                d = vr(XF + 8 * c + o, 4)
                k(f'{mf} {d}, {vr(C + 4 * t, 4)}, {ar(16 * c + 4 * t, 4)}, {d}')
    stamp(k, 6)
    for r in range(4):
        for c in range(2):
            k(f'v_cvt_pk_bf16_f32 v{P + 2 * r + c}, v{XF + 8 * c + r}, v{XF + 8 * c + 4 + r}')
        k(f'v_bfi_b32 v{P + 2 * r}, s31, v{P + 2 * r}, v{XR + 2 * r}')
        k(f'buffer_store_dwordx2 {vr(P + 2 * r, 2)}, v6, {WS}, s27 offen offset:{512 * r}')
    endk(k, 1)

    def cm_common(is_id):
        srd_tab(k)
        k('v_and_b32 v1, 63, v0')
        k('v_lshrrev_b32 v2, 6, v0')
        k('v_readfirstlane_b32 s21, v2')
        k('s_and_b32 s20, s21, 3')
        k('s_lshr_b32 s22, s21, 2')
        k('s_sub_u32 s23, s2, 160')
        k('v_lshrrev_b32 v3, 2, v0')
        k('v_and_b32 v4, 3, v0')
        k('v_lshlrev_b32 v7, 4, v1')
        k('v_lshrrev_b32 v6, 4, v3')
        k('v_lshlrev_b32 v6, 5, v6')
        k('v_lshl_add_u32 v6, v3, 6, v6')
        k('v_lshl_add_u32 v6, v4, 4, v6')
        X = 140
        if not is_id:
            k('v_mul_u32_u24 v5, 3840, v3')
            k('v_lshl_add_u32 v5, v4, 4, v5')
            k('s_lshl_b32 s24, s23, 6')
            for i in range(5):
                k(f'buffer_load_dwordx4 {vr(X + 4 * i, 4)}, v5, {AUX}, s24 offen')
                if i < 4:
                    k(f's_add_u32 s24, s24, {128 * 3840}')
        fft640_tables(k, 'v7', 's20')
        k('v_and_b32 v15, 15, v0')
        k('v_lshrrev_b32 v8, 4, v1')
        k('s_lshl_b32 s25, s23, 5')
        k('s_lshl_b32 s26, s22, 4')
        k('s_add_u32 s25, s25, s26')
        k('v_add_lshl_u32 v9, s25, v15, 2')
        k(f's_mov_b32 s26, {TAB_WQI if is_id else TAB_WQW}')
        k(f'buffer_load_dword v14, v9, {TAB}, s26 offen')
        k('v_bfe_u32 v9, v0, 2, 2')
        k('v_lshl_add_u32 v10, v8, 2, v9')
        k('v_mul_u32_u24 v10, 1056, v10')
        k('v_lshl_add_u32 v10, v4, 3, v10')
        k('s_lshl_b32 s26, s20, 8')
        k('s_lshl_b32 s27, s22, 5')
        k('s_add_u32 s26, s26, s27')
        k('v_add_u32 v10, s26, v10')
        k('v_and_b32 v9, 1, v9')
        k('v_lshl_add_u32 v11, v8, 1, v9')
        k('v_mul_u32_u24 v11, 1056, v11')
        k('v_lshl_add_u32 v11, v4, 3, v11')
        k(f's_add_u32 s26, s26, {32 * 1056}')
        k('v_add_u32 v11, s26, v11')
        k(f's_mul_i32 s27, s22, {E_BYTES}')
        k(f's_add_u32 s27, s27, {CM_IMG}')
        k('v_mul_u32_u24 v12, 5120, v8')
        k('v_lshl_add_u32 v12, v15, 4, v12')
        k('s_lshl_b32 s26, s20, 8')
        k('s_add_u32 s26, s26, s27')
        k('v_add_u32 v12, s26, v12')
        k('s_mul_i32 s26, s20, 5120')
        k('s_add_u32 s26, s26, s27')
        k('v_add_u32 v13, s26, v7')
        k(f's_mul_i32 s24, s20, {5 * 10240}')
        k(f's_add_u32 s24, s24, {M.WQ}')
        fft640_zero_b1(k, 2)
        if is_id:
            for x in range(4):
                k(f'v_mov_b32 v{X + x}, 0')
            for i in range(5):
                k(f'ds_write_b128 v6, {vr(X, 4)} offset:{8448 * i}')
            k('s_waitcnt lgkmcnt(0)')
            k('s_barrier')
            k('s_lshl_b32 s26, s23, 5')
            k('v_add_u32 v20, s26, v0')
            k('v_lshrrev_b32 v21, 4, v20')
            k('v_lshlrev_b32 v21, 5, v21')
            k('v_lshl_add_u32 v21, v20, 6, v21')
            k('v_lshl_add_u32 v21, v0, 1, v21')
            k('v_mov_b32 v22, 0x3f80')
            k('v_cmp_gt_u32 vcc, 32, v0')
            k('s_and_saveexec_b64 s[28:29], vcc')
            k('ds_write_b16 v21, v22')
            k('s_mov_b64 exec, s[28:29]')
        else:
            for i in range(5):
                k(f'ds_write_b128 v6, {vr(X + 4 * i, 4)} offset:{8448 * i}')
        k('s_waitcnt lgkmcnt(0)')
        k('s_barrier')
        for q in range(4):
            k(f'ds_read_b64_tr_b16 {vr(B0 + 4 * q, 2)}, v10 offset:{64 * q}')
            k(f'ds_read_b64_tr_b16 {vr(B0 + 4 * q + 2, 2)}, v10 offset:{64 * q + 16 * 1056}')
            k(f'ds_read_b64_tr_b16 {vr(B1 + 4 * q, 2)}, v11 offset:{64 * q}')
        k('v_lshrrev_b32 v9, 1, v8')
        k('v_mul_u32_u24 v9, 5120, v9')
        k('v_and_b32 v8, 1, v8')
        k('v_lshl_add_u32 v9, v8, 9, v9')
        k('v_add_u32 v14, v14, v9')
        fft640_stage1(k, 'v12')
        fft640_stage2(k, 'v13', False)
        if not is_id:
            k('s_cmp_eq_u32 s20, 0')
            k('s_cselect_b32 s26, 16, 0')
            k('v_cmp_gt_u32 vcc, s26, v1')
            k(f'v_cndmask_b32 v{D2 + 1}, v{D2 + 1}, 0, vcc' if False else f'v_mov_b32 v20, 0')
            k(f'v_cndmask_b32 v{D2 + 1}, v{D2 + 1}, v20, vcc')
        fft640_store_normal(k, 'v14', 's24', 10240)
        endk(k, 1)

    k('k2_b:')
    srd_from_arg(k, 8, 32, 640 * 3840)
    cm_common(False)
    k('k2_i:')
    cm_common(True)

    k('k2_c:')
    srd_from_arg(k, 8, 40, 640 * 1280)
    srd_tab(k)
    k('v_and_b32 v1, 63, v0')
    k('v_lshrrev_b32 v2, 6, v0')
    k('v_readfirstlane_b32 s21, v2')
    k('s_and_b32 s20, s21, 3')
    k('s_lshr_b32 s22, s21, 2')
    k('s_sub_u32 s23, s2, 220')
    k('s_mul_i32 s24, s23, 52')
    k('s_lshr_b32 s24, s24, 8')
    k('s_mul_i32 s25, s24, 5')
    k('s_sub_u32 s25, s23, s25')
    k('v_bfe_u32 v3, v0, 4, 4')
    k('v_and_b32 v4, 15, v0')
    k('v_and_b32 v5, 7, v3')
    k('s_lshl_b32 s25, s25, 3')
    k('v_add_u32 v5, s25, v5')
    k('v_mul_u32_u24 v6, 52, v5')
    k('v_lshrrev_b32 v6, 8, v6')
    k('v_mul_u32_u24 v6, 15, v6')
    k('v_add_u32 v5, v5, v6')
    k('v_lshrrev_b32 v6, 3, v3')
    k('v_mul_u32_u24 v6, 5, v6')
    k('v_add_u32 v5, v5, v6')
    k('s_mul_i32 s24, s24, 160')
    k('s_mul_i32 s25, s22, 10')
    k('s_add_u32 s24, s24, s25')
    k('v_add_u32 v5, s24, v5')
    k('v_mul_u32_u24 v5, 1280, v5')
    k('v_lshl_add_u32 v5, v4, 4, v5')
    X = 140
    for i in range(5):
        k(f'buffer_load_dwordx4 {vr(X + 4 * i, 4)}, v5, {AUX}, 0 offen offset:{256 * i}')
    k('v_lshlrev_b32 v7, 4, v1')
    fft640_tables(k, 'v7', 's20')
    k(f's_mul_i32 s27, s22, {X_IMG + E_BYTES}')
    k(f'v_mul_u32_u24 v6, {XP}, v3')
    k('v_lshl_add_u32 v6, v4, 4, v6')
    k('v_add_u32 v6, s27, v6')
    k('v_lshrrev_b32 v8, 4, v1')
    k('v_lshrrev_b32 v9, 2, v4')
    k('v_lshlrev_b32 v9, 3, v9')
    k('v_and_b32 v10, 3, v4')
    k('v_add_lshl_u32 v9, v9, v10, 2')
    k('s_mul_i32 s26, s20, 640')
    k(f's_add_u32 s26, s26, {TAB_WOP}')
    POS = 160
    for i in range(5):
        for t in range(2):
            k(f'buffer_load_dword v{POS + 2 * i + t}, v9, {TAB}, s26 offen offset:{128 * i + 16 * t}')
    k('v_lshrrev_b32 v9, 1, v8')
    k('v_lshl_add_u32 v9, v9, 4, v4')
    k('v_lshlrev_b32 v10, 2, v9')
    for i in range(5):
        k(f'buffer_load_dword v{POS + 10 + i}, v10, {TAB}, s26 offen offset:{128 * i}')
    k(f'v_mul_u32_u24 v9, {XP}, v4')
    k('s_lshl_b32 s26, s20, 3')
    k('s_add_u32 s26, s26, s27')
    k('v_add_u32 v9, s26, v9')
    k('v_lshl_add_u32 v10, v8, 7, v9')
    k('v_lshl_add_u32 v11, v8, 6, v9')
    k('v_add_u32 v11, 1024, v11')
    k('v_mul_u32_u24 v12, 5120, v8')
    k('v_lshl_add_u32 v12, v4, 4, v12')
    k('s_lshl_b32 s26, s20, 8')
    k('s_add_u32 s26, s26, s27')
    k(f's_add_u32 s26, s26, {X_IMG}')
    k('v_add_u32 v12, s26, v12')
    k('s_mul_i32 s26, s20, 5120')
    k('s_add_u32 s26, s26, s27')
    k(f's_add_u32 s26, s26, {X_IMG}')
    k('v_add_u32 v13, s26, v7')
    k('v_and_b32 v14, 1, v8')
    k('v_bfe_u32 v15, v0, 2, 2')
    k('v_lshl_add_u32 v15, v14, 3, v15')
    k(f'v_mul_u32_u24 v15, {XP}, v15')
    k('v_and_b32 v36, 3, v0')
    k('v_lshl_add_u32 v15, v36, 3, v15')
    k('v_lshrrev_b32 v36, 1, v8')
    k('v_lshl_add_u32 v15, v36, 5, v15')
    k('s_mul_i32 s26, s20, 320')
    k('s_add_u32 s26, s26, s27')
    k('v_add_u32 v15, s26, v15')
    k('s_mul_i32 s24, s23, 5120')
    k('s_lshl_b32 s25, s22, 9')
    k('s_add_u32 s24, s24, s25')
    k(f's_add_u32 s25, s24, {M.WOT}')
    k(f's_add_u32 s24, s24, {M.WOF}')
    k('v_lshlrev_b32 v37, 8, v14')
    k('v_lshlrev_b32 v38, 8, v36')
    k('v_lshl_add_u32 v38, v14, 3, v38')
    fft640_zero_b1(k, 1)
    for i in range(5):
        k(f'ds_write_b128 v6, {vr(X + 4 * i, 4)} offset:{256 * i}')
    k('s_waitcnt lgkmcnt(0)')
    k('s_barrier')
    fft640_core_from_rows(k, 'v10', 'v11')
    for i in range(5):
        k(f'ds_read_b64_tr_b16 {vr(X + 4 * i, 2)}, v15 offset:{64 * i}')
        k(f'ds_read_b64_tr_b16 {vr(X + 4 * i + 2, 2)}, v15 offset:{64 * i + 4 * XP}')
    for i in range(5):
        k(f'v_add_u32 v{POS + 10 + i}, v{POS + 10 + i}, v37')
        k(f'buffer_store_dwordx4 {vr(X + 4 * i, 4)}, v{POS + 10 + i}, {WS}, s25 offen')
    fft640_stage1(k, 'v12')
    fft640_stage2(k, 'v13', True)
    for i in range(5):
        for t in range(2):
            p = PK + 4 * i + 2 * t
            k(f'v_cvt_pk_bf16_f32 v{p}, v{D2 + 8 * i + 4 * t}, v{D2 + 8 * i + 4 * t + 1}')
            k(f'v_cvt_pk_bf16_f32 v{p + 1}, v{D2 + 8 * i + 4 * t + 2}, v{D2 + 8 * i + 4 * t + 3}')
            k(f'v_add_u32 v{POS + 2 * i + t}, v{POS + 2 * i + t}, v38')
            k(f'buffer_store_dwordx2 {vr(p, 2)}, v{POS + 2 * i + t}, {WS}, s24 offen')
    endk(k, 1)
    return k
```

```python
from gen import *

K3_LDS = 4 * 16384 + 24576 + 512
K6_LDS = 4 * 20480 + 24576 + 512
LOG2E = math.log2(math.e)
LN2 = math.log(2.0)


def gen_k3(is6):
    k = Kern()
    nm = 'k6' if is6 else 'k3'
    NT = 5 if is6 else 4
    PF = 2
    NS = 4
    KP = NT * 1024
    CH = 4 * KP
    XIN = M.XH3 if is6 else M.XH1
    PQ = M.PQ2 if is6 else M.PQ1
    KVS = M.KVS2 if is6 else M.KVS1
    A0, ACC = 16, 176
    mf = 'v_mfma_f32_32x32x16_bf16'
    k(f'{nm}_kernel:')
    stamp_start(k, 5 if is6 else 2)
    k('s_cmp_ge_u32 s2, 256')
    k(f's_cbranch_scc1 {nm}_exit')
    srd_from_arg(k, 4, 64, M.WS_USED)
    k('v_and_b32 v1, 63, v0')
    k('v_lshrrev_b32 v2, 6, v0')
    k('v_readfirstlane_b32 s20, v2')
    k('v_and_b32 v2, 31, v0')
    k('v_bfe_u32 v3, v0, 5, 1')
    k('s_bfe_u32 s21, s2, 0x20001')
    k('s_lshl_b32 s21, s21, 2')
    k('s_lshr_b32 s22, s2, 6')
    k('s_add_u32 s21, s21, s22')
    k('s_and_b32 s22, s2, 1')
    k('s_lshl_b32 s22, s22, 3')
    k('s_bfe_u32 s23, s2, 0x30003')
    k('s_add_u32 s22, s22, s23')
    k('s_lshl_b32 s23, s21, 7')
    k('s_lshl_b32 s24, s20, 5')
    k('s_add_u32 s23, s23, s24')
    k('v_add_lshl_u32 v4, s23, v2, 4')
    k('v_lshl_add_u32 v5, v3, 15, v4')
    k('v_lshlrev_b32 v6, 4, v1')
    k(f's_mov_b32 s25, {XIN}')
    k('s_mul_i32 s26, s22, 204800')
    k('s_mul_i32 s27, s20, 5120')
    k('s_add_u32 s26, s26, s27')
    k(f's_add_u32 s26, s26, {M.WQ}')
    k(f's_mul_i32 s27, s20, {KP}')
    issued = []

    def issue_part(c, i):
        if i == 0:
            k(f's_add_u32 m0, s27, {(c % NS) * CH}')
        k(f'buffer_load_dwordx4 v6, {WS}, s26 offen offset:{1024 * i} lds')
        issued.append(('B', c))
        if i == 3:
            if NT == 5:
                k('s_add_u32 m0, m0, 4096')
                k('s_add_u32 s28, s26, 4096')
                k(f'buffer_load_dwordx4 v6, {WS}, s28 offen lds')
                issued.append(('B', c))
            k('s_add_u32 s26, s26, 20480')
        ks = 4 * c + i
        k(f'buffer_load_dwordx4 {vr(A0 + 4 * ks, 4)}, v5, {WS}, s25 offen')
        k('s_add_u32 s25, s25, 65536')
        issued.append(('A', c))

    def issue_chunk(c):
        for i in range(4):
            issue_part(c, i)

    def wait_chunk(c):
        last = max(i for i, t in enumerate(issued) if t == ('B', c))
        k(f's_waitcnt vmcnt({len(issued) - 1 - last})')
        k('s_barrier')

    def read_frags(ks):
        base = ((ks // 4) % NS) * CH + (ks % 4) * KP
        for st in range(NT):
            off = base + st * 1024
            areg, o = ('v6', off) if off < 65536 else (('v7', off - 65536) if off < 131072 else ('v10', off - 131072))
            k(f'ds_read_b128 {ar(20 * (ks % 2) + 4 * st, 4)}, {areg} offset:{o}')

    for c in range(PF):
        issue_chunk(c)
    stamp(k, 1)
    k('v_add_u32 v7, 0x10000, v6')
    k('v_add_u32 v10, 0x20000, v6')
    k('v_lshlrev_b32 v11, 2, v3')
    k('v_sub_u32 v11, v2, v11')
    k('v_and_b32 v12, 1, v11')
    k('v_lshlrev_b32 v12, 4, v12')
    k('v_mov_b32 v13, 0x3f80')
    k('v_lshlrev_b32 v12, v12, v13')
    k('v_or_b32 v11, 1, v11')
    for s in range(2):
        for q in range(4):
            K0 = 16 * s + 8 * (q // 2) + 2 * (q % 2)
            k(f'v_cmp_eq_u32 vcc, {K0 + 1}, v11')
            k('v_cndmask_b32 v13, 0, v12, vcc')
            k(f'v_accvgpr_write_b32 a{40 + 4 * s + q}, v13')
    k('v_cmp_eq_u32 vcc, 0, v3')
    k('v_mov_b32 v11, -1')
    k('v_mov_b32 v12, 0xffff')
    k('v_cndmask_b32 v11, v11, v12, vcc')
    wait_chunk(0)
    stamp(k, 2)
    read_frags(0)
    m4 = 'v_mfma_f32_4x4x4_16b_bf16'
    for ks in range(40):
        c = ks // 4
        if ks % 4 == 3 and c + 1 < 10:
            wait_chunk(c + 1)
        if ks == 20:
            stamp(k, 3)
        if ks + 1 < 40:
            read_frags(ks + 1)
        A = vr(A0 + 4 * ks, 4)
        for st in range(NT):
            d = vr(ACC + 16 * st, 16)
            B = ar(20 * (ks % 2) + 4 * st, 4)
            x, y = (A, B) if st < 4 else (B, A)
            k(f'{mf} {d}, {x}, {y}, {d if ks else 0}')
            if st == 0 and c + PF < 10:
                issue_part(c + PF, ks % 4)
            if st in (1, 2):
                h = st - 1
                r = vr(A0 + 4 * ks + 2 * h, 2)
                sq = ar(48 + 4 * h, 4)
                if ks == 0 and h == 0:
                    k(f'v_and_b32 v12, v{A0}, v11')
                    k(f'v_mov_b32 v13, v{A0 + 1}')
                    r = 'v[12:13]'
                k(f'{m4} {sq}, {r}, {r}, {sq if ks else 0}')
    stamp(k, 4)
    KVB = NS * CH
    RB = KVB + 24576
    for i in range(8):
        k(f'v_accvgpr_read_b32 v{16 + i}, a{48 + i}')
    for i in range(4):
        k(f'v_add_f32 v{16 + i}, v{16 + i}, v{20 + i}')
    k('v_and_b32 v9, 3, v0')
    k('v_mov_b32 v8, v16')
    for i in range(1, 4):
        k(f'v_cmp_eq_u32 vcc, {i}, v9')
        k(f'v_cndmask_b32 v8, v8, v{16 + i}, vcc')
    k('v_mov_b32 v9, v8')
    k('v_permlane32_swap_b32 v8, v9')
    k('v_add_f32 v8, v8, v9')
    k(f'v_mov_b32 v9, {fhex(1e-5 * LN2 * LN2)}')
    k(f'v_fmamk_f32 v8, v8, {fhex(LN2 * LN2 / 640)}, v9')
    k('v_rsq_f32 v8, v8')
    k('s_lshl_b32 s28, s20, 7')
    k(f's_add_u32 s28, s28, {RB}')
    k('v_lshl_add_u32 v9, v2, 2, s28')
    k('v_lshl_add_u32 v12, v3, 4, s28')
    k('ds_write_b32 v9, v8')
    RR, TM, TE, PP, PB1, MG, DKV, DT, ST = 16, 32, 48, 64, 96, 104, 112, 144, 32
    for g in range(4):
        k(f'ds_read_b128 {vr(RR + 4 * g, 4)}, v12 offset:{32 * g}')
    if is6:
        k('s_mul_i32 s29, s22, 163840')
        k(f's_add_u32 s29, s29, {M.X3}')
        for gq in range(2):
            for x in range(4):
                k(f'v_cvt_pk_bf16_f32 v{TM + 4 * gq + x}, v{ACC + 64 + 8 * gq + 2 * x}, v{ACC + 64 + 8 * gq + 2 * x + 1}')
            k(f'buffer_store_dwordx4 {vr(TM + 4 * gq, 4)}, v5, {WS}, s29 offen')
            k('s_add_u32 s29, s29, 65536')
    k('v_cmp_gt_u32 s[30:31], 12, v2')
    k('v_cmp_eq_u32 s[32:33], 11, v2')
    k('v_cmp_le_u32 s[34:35], 8, v2')
    k('s_and_b64 s[34:35], s[34:35], s[30:31]')
    k('v_mov_b32 v13, 0xff800000')
    k(f'v_mov_b32 v14, {fhex(1e-6 * LOG2E)}')
    k('v_cndmask_b32 v15, v13, v14, s[30:31]')
    k('v_cndmask_b32 v13, v13, 0, s[30:31]')
    k(f's_mov_b32 s36, {fhex(LN2)}')
    k(f's_mov_b32 s37, {fhex(LN2)}')
    k('v_mov_b32 v11, 0x3f803f80')
    for hh in range(2):
        for tb in range(2):
            st = 2 * hh + tb
            a = ACC + 16 * st
            hi, lo = ('v13', 'v15') if tb else ('0', 'v14')
            for h in range(8):
                k(f'v_pk_mul_f32 {vr(TM + 2 * h, 2)}, {vr(a + 2 * h, 2)}, {vr(RR + 2 * h, 2)}')
            for r in range(16):
                k(f'v_min_f32 v{TE + r}, {hi}, v{TM + r}')
                k(f'v_exp_f32 v{TE + r}, v{TE + r}')
                k(f'v_max_f32 v{TM + r}, {lo}, v{TM + r}')
            for h in range(8):
                k(f'v_pk_fma_f32 {vr(TM + 2 * h, 2)}, {vr(TM + 2 * h, 2)}, s[36:37], {vr(TE + 2 * h, 2)}')
            if tb and is6:
                for r in range(16):
                    k(f'v_cndmask_b32 v{TM + r}, v{TM + r}, v{a + r}, s[34:35]')
            for q in range(8):
                k(f'v_cvt_pk_bf16_f32 v{PP + 8 * st + q}, v{TM + 2 * q}, v{TM + 2 * q + 1}')
        pa, pb = PP + 16 * hh, PP + 16 * hh + 8
        for q in range(8):
            k(f'v_cndmask_b32 v{PB1 + q}, v{pb + q}, v11, s[32:33]')
            k(f'v_cndmask_b32 v{MG + q}, v{pa + q}, v{pb + q}, s[30:31]')
        for s in range(2):
            d = vr(DKV + 16 * hh, 16)
            k(f'{mf} {d}, {vr(PB1 + 4 * s, 4)}, {vr(pa + 4 * s, 4)}, {d if s else 0}')
        for s in range(2):
            d = vr(DT + 16 * hh, 16)
            k(f'{mf} {d}, {vr(MG + 4 * s, 4)}, {ar(40 + 4 * s, 4)}, {d if s else 0}')
    stamp(k, 5)
    k('s_mul_i32 s28, s20, 6144')
    k(f's_add_u32 s28, s28, {KVB}')
    k('v_lshl_add_u32 v9, v1, 3, s28')
    k('s_mul_i32 s28, s20, 1536')
    k(f's_add_u32 s28, s28, {KVB}')
    k('v_lshl_add_u32 v12, v1, 3, s28')
    for hh in range(2):
        for pr in range(6):
            k(f'ds_write_b64 v9, {vr(DKV + 16 * hh + 4 + 2 * pr, 2)} offset:{512 * (6 * hh + pr)}')
    k('s_mul_i32 s29, s22, 163840')
    k(f's_add_u32 s38, s29, {PQ}')
    for hh in range(2):
        d = DT + 16 * hh
        for x, rr in enumerate((0, 2, 12, 14)):
            k(f'v_cvt_pk_bf16_f32 v{ST + 4 * hh + x}, v{d + rr}, v{d + rr + 1}')
        k(f'buffer_store_dwordx4 {vr(ST + 4 * hh, 4)}, v5, {WS}, s38 offen')
        k('s_add_u32 s38, s38, 65536')
    k('v_cmp_eq_u32 vcc, 0, v3')
    for hh in range(2):
        d = DT + 16 * hh
        for x in range(2):
            k(f'v_cvt_pk_bf16_f32 v{ST + 8 + 2 * hh + x}, v{d + 8 + 2 * x}, v{d + 9 + 2 * x}')
            if is6:
                k(f'v_cvt_pk_bf16_f32 v{ST + 12}, v{d + 4 + 2 * x}, v{d + 5 + 2 * x}')
                k(f'v_cndmask_b32 v{ST + 8 + 2 * hh + x}, v{ST + 8 + 2 * hh + x}, v{ST + 12}, vcc')
    k(f'v_mov_b32 v13, {PQ}')
    k(f'v_mov_b32 v14, {M.X3 if is6 else 0x40000000}')
    k('v_cndmask_b32 v13, v13, v14, vcc')
    k('v_add_u32 v13, v13, v4')
    k(f's_add_u32 s29, s29, {4 * 32768}')
    k(f'buffer_store_dwordx4 {vr(ST + 8, 4)}, v13, {WS}, s29 offen')
    k('s_lshr_b32 s39, s20, 1')
    k('s_and_b32 s40, s20, 1')
    k('s_lshl_b32 s41, s39, 2')
    k('v_cmp_le_u32 s[30:31], 16, v2')
    k('v_mov_b32 v14, s41')
    k('v_cndmask_b32 v14, 0, v14, s[30:31]')
    k('v_add_lshl_u32 v14, v14, v2, 2')
    k('v_mul_u32_u24 v15, 384, v3')
    k('v_add_u32 v14, v14, v15')
    k('v_cmp_gt_u32 s[50:51], 20, v2')
    k('v_add_u32 v13, s40, v3')
    k('v_cmp_ne_u32 s[52:53], 0, v13')
    k('s_and_b64 s[52:53], s[52:53], s[50:51]')
    k('s_lshl_b32 s41, s22, 1')
    k('s_add_u32 s41, s41, s39')
    k('s_mul_i32 s41, s41, 2016')
    k(f's_add_u32 s41, s41, {KVS}')
    k('s_waitcnt lgkmcnt(0)')
    k('s_barrier')
    RD = 48
    for wv in range(4):
        for i in range(3):
            k(f'ds_read_b64 {vr(RD + 6 * wv + 2 * i, 2)}, v12 offset:{6144 * wv + 512 * i}')
    row0 = lambda rho: 8 * (rho // 4) + rho % 4
    k('s_cmp_eq_u32 s40, 0')
    for i in range(6):
        k(f's_cselect_b32 s{42 + i}, {(row0(4 + i) - 11) * 96}, {(row0(10 + i) - 11) * 96}' if False else f's_mov_b32 s{42 + i}, {(row0(10 + i) - 11) * 96}')
        k(f's_cselect_b32 s{42 + i}, {(row0(4 + i) - 11) * 96}, s{42 + i}')
    for i in range(6):
        k(f's_add_u32 s{42 + i}, s{42 + i}, s41')
    for i in range(3):
        x = RD + 2 * i
        k(f'v_pk_add_f32 {vr(x, 2)}, {vr(x, 2)}, {vr(x + 6, 2)}')
        k(f'v_pk_add_f32 {vr(x + 12, 2)}, {vr(x + 12, 2)}, {vr(x + 18, 2)}')
        k(f'v_pk_add_f32 {vr(x, 2)}, {vr(x, 2)}, {vr(x + 12, 2)}')
    stamp(k, 6)
    k('s_mov_b64 exec, s[52:53]')
    for i in range(6):
        if i == 3:
            k('s_mov_b64 exec, s[50:51]')
        k(f'buffer_atomic_add_f32 v{RD + i}, v14, {WS}, s{42 + i} offen')
    k('s_mov_b64 exec, -1')
    endk(k, 2)
    k(f'{nm}_exit:')
    k('s_endpgm')
    return k
```

```python
from gen import *

KVI = 102400
K4_LDS = KVI + 32768


def gen_k4():
    k = Kern()
    mf = 'v_mfma_f32_16x16x32_bf16'
    for nm, kidx in (('k4', 3), ('k7', 6)):
        k(f'{nm}_kernel:')
        stamp_start(k, kidx)
        k('s_cmp_ge_u32 s2, 256')
        k('s_cbranch_scc1 k4_exit')
        srd_from_arg(k, 4, 64, M.WS_USED)
        if nm == 'k4':
            srd_from_arg(k, 8, 64, M.WS_USED)
            k(f's_mov_b32 s40, {M.PQ1}')
            k(f's_mov_b32 s41, {M.KVS1}')
            k(f's_mov_b32 s42, {M.WOF}')
            k(f's_mov_b32 s43, {M.XH1}')
            k(f's_mov_b32 s44, {M.XH2}')
            k('s_mov_b32 s45, 32768')
            k('s_mov_b32 s46, 16')
            k('s_branch k4_main')
        else:
            srd_from_arg(k, 8, 48, 2048 * 1280)
            k(f's_mov_b32 s40, {M.PQ2}')
            k(f's_mov_b32 s41, {M.KVS2}')
            k(f's_mov_b32 s42, {M.WOT}')
            k(f's_mov_b32 s43, {M.X3}')
            k('s_mov_b32 s44, 0')
            k('s_mov_b32 s45, 16')
            k('s_mov_b32 s46, 1280')
    k('k4_main:')
    k('v_and_b32 v1, 63, v0')
    k('v_lshrrev_b32 v2, 6, v0')
    k('v_readfirstlane_b32 s20, v2')
    k('v_and_b32 v2, 15, v0')
    k('v_bfe_u32 v3, v0, 4, 2')
    k('s_bfe_u32 s21, s2, 0x20001')
    k('s_lshl_b32 s21, s21, 3')
    k('s_lshr_b32 s22, s2, 5')
    k('s_add_u32 s21, s21, s22')
    k('s_and_b32 s22, s2, 1')
    k('s_lshl_b32 s22, s22, 2')
    k('s_bfe_u32 s23, s2, 0x20003')
    k('s_add_u32 s22, s22, s23')
    k('s_lshl_b32 s23, s21, 6')
    k('s_lshl_b32 s24, s20, 4')
    k('s_add_u32 s23, s23, s24')
    k('v_add_u32 v4, s23, v2')
    k('v_lshlrev_b32 v5, 4, v0')
    k('v_lshlrev_b32 v6, 4, v1')
    k('v_lshlrev_b32 v7, 15, v3')
    k('v_lshl_add_u32 v8, v4, 4, v7')
    k('v_mov_b32 v9, v8')
    k('v_add_u32 v10, 0x10000, v8')
    k('v_cmp_eq_u32 vcc, 2, v3')
    k('v_cndmask_b32 v9, v9, v10, vcc')
    k('v_cmp_eq_u32 vcc, 3, v3')
    k('v_mov_b32 v11, 0x40000000')
    k('v_cndmask_b32 v9, v9, v11, vcc')
    k('v_cndmask_b32 v10, v10, v11, vcc')
    k('s_mul_i32 s25, s22, 102400')
    k('s_add_u32 s25, s25, s42')
    k('s_lshl_b32 s26, s20, 10')
    k('s_add_u32 s25, s25, s26')
    k('s_mov_b32 s27, s26')
    KS, DD, PO, ACC, RS, RF = 16, 80, 144, 164, 184, 196
    issued = []
    hi = [7, 13, 19, 25]
    lo = [0, 7, 13, 19]

    def group_ops(o):
        ops = []
        for i in range(4):
            ops.append(('kv', o, i))
        n = hi[o] - lo[o]
        for i in range(8):
            ops.append(('pq', o, i))
            if i < n:
                ops.append(('dma', o, i))
        return ops

    def issue(op):
        kind, o, i = op
        if kind == 'kv':
            k(f'buffer_load_dwordx4 {vr(KS + 16 * o + 4 * i, 4)}, v5, {WS}, s41 offen')
            k('s_add_u32 s41, s41, 4096')
        elif kind == 'pq':
            h = 8 * o + i
            k(f'buffer_load_dwordx4 {ar(4 * h, 4)}, {"v9" if h % 2 == 0 else "v10"}, {WS}, s40 offen')
            if h % 2:
                k(f's_add_u32 s40, s40, {5 * 32768}')
        elif kind == 'dma':
            k('s_mov_b32 m0, s27')
            k('s_add_u32 s27, s27, 4096')
            k(f'buffer_load_dwordx4 v6, {WS}, s25 offen lds')
            k('s_add_u32 s25, s25, 4096')
        elif kind == 'res':
            if i < 2:
                k(f'buffer_load_dwordx4 {vr(RS + 4 * i, 4)}, v8, {WS}, s43 offen')
                k(f's_add_u32 s43, s43, {4 * 32768}')
            else:
                k(f'buffer_load_dwordx2 {vr(RS + 8, 2)}, v15, {WS}, s43 offen')
        issued.append(op)

    for op in group_ops(0) + group_ops(1):
        issue(op)
    stamp(k, 1)
    k('v_lshlrev_b32 v11, 3, v0')
    k(f'v_add_u32 v11, {KVI}, v11')
    k('v_lshrrev_b32 v12, 2, v2')
    k('v_mul_u32_u24 v12, 5, v12')
    k('v_and_b32 v13, 3, v2')
    k('v_add3_u32 v14, v12, v13, 1')
    k('v_add_u32 v12, 5, v12')
    k('v_cmp_eq_u32 vcc, 0, v13')
    k('v_cndmask_b32 v12, 0, v12, vcc')
    k('v_min_u32 v13, 2, v3')
    k('v_lshlrev_b32 v13, 4, v13')
    k(f'v_add_u32 v13, {KVI}, v13')
    k('v_mad_u32_u24 v12, v12, 48, v13')
    k('v_mad_u32_u24 v13, v14, 48, v13')
    k('v_add_u32 v14, 0x10000, v6')
    k('v_lshrrev_b32 v15, 1, v3')
    k('v_lshlrev_b32 v15, 15, v15')
    k('v_and_b32 v7, 1, v3')
    k('v_lshl_add_u32 v15, v7, 3, v15')
    k('v_lshl_add_u32 v15, v4, 4, v15')
    k('s_mul_i32 s28, s22, 327680')
    k('s_add_u32 s43, s43, s28')
    k(f's_mov_b32 s29, {fhex(1e-6)}')
    pend = []
    KF, WF = 128, 160
    for o in range(4):
        if o == 0:
            pend = group_ops(2)
        elif o == 1:
            pend = group_ops(3) + [('res', 0, i) for i in range(3)]
        else:
            pend = []
        for i in range(4):
            b = KS + 16 * o + 4 * i
            k(f'v_cvt_pk_bf16_f32 v{b}, v{b}, v{b + 1}')
            k(f'v_cvt_pk_bf16_f32 v{b + 1}, v{b + 2}, v{b + 3}')
            k(f'ds_write_b64 v11, {vr(b, 2)} offset:{2048 * (4 * o + i)}')
        last = max(i for i, t in enumerate(issued) if t[0] == 'dma' and t[1] == o)
        k(f's_waitcnt vmcnt({len(issued) - 1 - last}) lgkmcnt(0)')
        k('s_barrier')
        if o < 3:
            stamp(k, 2 + o)

        def rd_kv(hh):
            h = 8 * o + hh
            k(f'ds_read_b128 {ar(KF + 8 * (hh % 4), 4)}, v13 offset:{1008 * h}')
            k(f'ds_read_b128 {ar(KF + 8 * (hh % 4) + 4, 4)}, v12 offset:{1008 * h}')

        def rd_wo(f):
            for t in range(5):
                off = ((5 * o + f) * 5 + t) * 1024
                base, oo = ('v6', off) if off < 65536 else ('v14', off - 65536)
                k(f'ds_read_b128 {ar(WF + 20 * (f % 2) + 4 * t, 4)}, {base} offset:{oo}')

        def fin(hh):
            d = DD + 8 * hh
            k(f'v_add_f32 v{d + 6}, s29, v{d + 5}')
            k(f'v_rcp_f32 v{d + 6}, v{d + 6}')
            k(f'v_pk_mul_f32 {vr(d, 2)}, {vr(d, 2)}, {vr(d + 6, 2)} op_sel_hi:[1,0]')
            k(f'v_pk_mul_f32 {vr(d + 2, 2)}, {vr(d + 2, 2)}, {vr(d + 6, 2)} op_sel_hi:[1,0]')
            k(f'v_mul_f32 v{d + 4}, v{d + 4}, v{d + 6}')

        oreg = lambda u: DD + 8 * (u // 5) + u % 5
        for hh in range(3):
            rd_kv(hh)
        for hh in range(8):
            if hh + 3 < 8:
                rd_kv(hh + 3)
            if hh == 6:
                rd_wo(0)
            h = 8 * o + hh
            for t in range(2):
                k(f'{mf} {vr(DD + 8 * hh + 4 * t, 4)}, {ar(KF + 8 * (hh % 4) + 4 * t, 4)}, {ar(4 * h, 4)}, 0')
            if pend:
                issue(pend.pop(0))
            if hh >= 2:
                fin(hh - 2)
        fin(6)
        packed = 0

        def pack_upto(n):
            nonlocal packed
            while packed < n:
                k(f'v_cvt_pk_bf16_f32 v{PO + packed}, v{oreg(2 * packed)}, v{oreg(2 * packed + 1)}')
                packed += 1
        pack_upto(4)
        fin(7)
        for f in range(5):
            if f + 1 < 5:
                rd_wo(f + 1)
                pack_upto(4 * (f + 2))
            for t in range(5):
                d = vr(ACC + 4 * t, 4)
                k(f'{mf} {d}, {ar(WF + 20 * (f % 2) + 4 * t, 4)}, {vr(PO + 4 * f, 4)}, {d if (o or f) else 0}')
                if pend and t % 2 == 0:
                    issue(pend.pop(0))
        assert not pend, pend
        if o == 2:
            for x in range(10):
                k(f'v_lshlrev_b32 v{RF + 2 * x}, 16, v{RS + x}')
                k(f'v_and_b32 v{RF + 2 * x + 1}, 0xffff0000, v{RS + x}')
            k('v_mul_lo_u32 v9, v3, s45')
            k('v_mul_lo_u32 v10, v4, s46')
            k('v_add_u32 v9, v9, v10')
            k('v_lshrrev_b32 v8, 1, v3')
            k('v_mul_lo_u32 v8, v8, s45')
            k('v_lshl_add_u32 v8, v7, 3, v8')
            k('v_add_u32 v10, v8, v10')
            k('s_mul_i32 s30, s22, 10')
            k('s_mul_i32 s30, s30, s45')
            k('s_add_u32 s30, s30, s44')
            k('s_lshl_b32 s31, s45, 2')
            k('s_add_u32 s32, s30, s31')
            k('s_add_u32 s33, s32, s31')
    stamp(k, 5)
    for x in range(10):
        k(f'v_pk_add_f32 {vr(ACC + 2 * x, 2)}, {vr(ACC + 2 * x, 2)}, {vr(RF + 2 * x, 2)}')
    for x in range(10):
        k(f'v_cvt_pk_bf16_f32 v{PO + x}, v{ACC + 2 * x}, v{ACC + 2 * x + 1}')
        if x == 3:
            k(f'buffer_store_dwordx4 {vr(PO, 4)}, v9, {AUX}, s30 offen')
        if x == 7:
            k(f'buffer_store_dwordx4 {vr(PO + 4, 4)}, v9, {AUX}, s32 offen')
    k(f'buffer_store_dwordx2 {vr(PO + 8, 2)}, v10, {AUX}, s33 offen')
    k('s_cmp_eq_u32 s46, 16')
    k('s_cbranch_scc0 k4_done')
    k('s_cmp_eq_u32 s22, 0')
    k('s_cselect_b32 s34, 16, 0')
    k('v_cmp_gt_u32 vcc, s34, v1')
    k('v_mov_b32 v12, 0')
    k(f'v_cndmask_b32 v{ACC + 1}, v{ACC + 1}, v12, vcc')
    k(f'v_pk_mul_f32 v[12:13], {vr(ACC, 2)}, {vr(ACC, 2)}')
    k(f'v_pk_mul_f32 v[14:15], {vr(ACC + 2, 2)}, {vr(ACC + 2, 2)}')
    for x in range(2, 10):
        t = 'v[12:13]' if x % 2 == 0 else 'v[14:15]'
        k(f'v_pk_fma_f32 {t}, {vr(ACC + 2 * x, 2)}, {vr(ACC + 2 * x, 2)}, {t}')
    k('v_pk_add_f32 v[12:13], v[12:13], v[14:15]')
    k('v_add_f32 v12, v12, v13')
    k('v_mov_b32 v13, v12')
    k('v_permlane16_swap_b32 v12, v13')
    k('v_add_f32 v12, v12, v13')
    k('v_mov_b32 v13, v12')
    k('v_permlane32_swap_b32 v12, v13')
    k('v_add_f32 v12, v12, v13')
    k('v_lshlrev_b32 v13, 2, v4')
    k(f's_mov_b32 s34, {M.SSQ2}')
    k('s_mov_b64 exec, 0xffff')
    k(f'buffer_atomic_add_f32 v12, v13, {WS}, s34 offen')
    k('s_mov_b64 exec, -1')
    endk(k, 3)
    k('k4_done:')
    endk(k, 3)
    k('k4_exit:')
    k('s_endpgm')
    return k
```

```python
import numpy as np
S, D, H, Dh = 2048, 640, 32, 20
def bf2f(u): return (np.asarray(u).astype(np.uint32) << 16).view(np.float32)
def f2bf(x):
    x = np.ascontiguousarray(x, dtype=np.float32); u = x.view(np.uint32)
    return ((u + 0x7FFF + ((u >> 16) & 1)) >> 16).astype(np.uint16)
def rb(x): return bf2f(f2bf(x))

XH_BYTES = 80 * 2048 * 16
off = 0
def _alloc(n):
    global off
    o = off; off += (n + 4095) // 4096 * 4096; return o
XH0 = _alloc(XH_BYTES); XH1 = _alloc(XH_BYTES); XH2 = _alloc(XH_BYTES); XH3 = _alloc(XH_BYTES)
X3 = _alloc(XH_BYTES); PQ1 = _alloc(XH_BYTES); PQ2 = _alloc(XH_BYTES)
WT = _alloc(XH_BYTES)
WQ = _alloc(16 * 40 * 5 * 1024)
WOF = _alloc(8 * 100 * 1024); WOT = _alloc(8 * 100 * 1024)
SSQ0 = _alloc(8192)
ZERO_START = off
SSQ2 = _alloc(8192)
KVS_BYTES = 32 * 21 * 96
KVS1 = _alloc(KVS_BYTES + 1024); KVS2 = _alloc(KVS_BYTES + 1024)
ZERO_END = off
STAMP = _alloc(8 * 131072)
WS_USED = off

def freq(cs):
    b, m = divmod(cs, 16)
    if b >= 1: return b + 40 * m if m < 8 else 40 - b + 40 * (m - 8)
    if m == 0: return 320
    return 40 * m if m < 8 else 20 + 40 * (m - 8)
FREQ = np.array([freq(c) for c in range(320)])
assert sorted(FREQ) == list(range(1, 321))
def Fmat():
    d = np.arange(D)[:, None]; F = np.zeros((D, D))
    c = FREQ[None, :]
    F[:, 0::2] = np.sqrt(2 / D) * np.cos(2 * np.pi * d * c / D)
    F[:, 1::2] = -np.sqrt(2 / D) * np.sin(2 * np.pi * d * c / D)
    F[:, 0] = ((-1.0) ** np.arange(D)) / np.sqrt(D)
    F[:, 1] = 1 / np.sqrt(D)
    return F
def T1mat():
    n1 = np.arange(40); T1 = np.zeros((20, 2, 40)); s1 = 1 / np.sqrt(40)
    T1[0, 0] = s1; T1[0, 1] = s1 * (-1.0) ** n1
    for b in range(1, 20):
        T1[b, 0] = np.sqrt(2) * s1 * np.cos(2 * np.pi * b * n1 / 40); T1[b, 1] = -np.sqrt(2) * s1 * np.sin(2 * np.pi * b * n1 / 40)
    return T1
def T2mat():
    T1 = T1mat(); M1 = np.zeros((D, 20, 2, 16))
    for n2 in range(16): M1[n2::16, :, :, n2] = T1.transpose(2, 0, 1)
    T2 = M1.reshape(D, D).T @ Fmat()
    T2[np.abs(T2) < 1e-9] = 0
    T2 = T2.reshape(20, 2, 16, 20, 32)
    for b in range(20):
        for b2 in range(20):
            if b != b2: assert np.all(T2[b, :, :, b2] == 0), (b, b2)
    return np.stack([T2[b, :, :, b] for b in range(20)])
def n1_of(g, i): return 16 * (i // 4) + 4 * g + i % 4 if i < 8 else 32 + 2 * g + (i - 8)
def T1table():
    T1 = T1mat(); tab = np.zeros((3, 2, 64, 8), np.float32)
    for t in range(3):
        for l in range(64):
            i, g = l % 16, l // 16
            sig = 4 * t + i % 4; gp = i // 4
            if sig >= 10: continue
            b, ri = 5 * gp + sig // 2, sig % 2
            for e in range(8): tab[t, 0, l, e] = T1[b, ri, n1_of(g, e)]
            for e in range(2): tab[t, 1, l, e] = T1[b, ri, n1_of(g, 8 + e)]
    return f2bf(tab)
def T2table():
    T2 = T2mat(); tab = np.zeros((20, 2, 64, 8), np.float32)
    for b in range(20):
        for t in range(2):
            for l in range(64):
                i, g = l % 16, l // 16
                kl = 8 * (i // 4) + 4 * t + i % 4
                for ri in range(2):
                    for q in range(4): tab[b, t, l, 4 * ri + q] = T2[b, ri, 4 * g + q, kl]
    return f2bf(tab)
def fft640(x):
    V = x.shape[0]
    xm = x.reshape(V, 40, 16).astype(np.float32)
    U = rb(np.einsum('brn,vnm->vbrm', rb(T1mat()), xm))
    return np.einsum('vbrm,brmk->vbk', U, rb(T2mat())).reshape(V, D).astype(np.float32)

def to_gran(a):
    return np.ascontiguousarray(f2bf(a).reshape(a.shape[0], 80, 8).transpose(1, 0, 2))
def from_gran(u, rows=2048):
    return bf2f(u.reshape(80, rows, 8).transpose(1, 0, 2).reshape(rows, 640))

def wq_col(nt, st, cl):
    if st == 4:
        hf = (cl // 4) % 2; rho = 4 * (cl // 8) + cl % 4
        gi = 2 * (rho // 8) + hf
        return ('i', 40 * nt + 8 * gi + rho % 8)
    hh = st // 2; h = 2 * nt + hh
    if st % 2 == 0:
        if cl < 20: return ('w', 640 + 20 * h + cl)
        d = {20: 16, 24: 4, 28: 12}[cl // 4 * 4] + cl % 4
        return ('w', 20 * h + d)
    if cl < 4: return ('w', 20 * h + cl)
    if cl < 8: return ('w', 20 * h + 8 + cl - 4)
    if cl < 12: return ('i', 40 * nt + 32 + 4 * hh + cl - 8)
    return ('w', 1280 + 20 * h + cl - 12)
WQ_POS_W = np.zeros(1920, np.int64); WQ_POS_I = np.zeros(640, np.int64)
for nt in range(16):
    for st in range(5):
        for cl in range(32):
            k, n = wq_col(nt, st, cl)
            (WQ_POS_W if k == 'w' else WQ_POS_I)[n] = nt * 204800 + st * 1024 + cl * 16
def wq_joff(j): return (j // 2) * 5120 + (j % 2) * 512
def build_WQ(Wp, Fi):
    img = np.zeros(16 * 40 * 5 * 512, np.uint16)
    for src, pos in ((Wp, WQ_POS_W), (Fi, WQ_POS_I)):
        u = f2bf(src).reshape(-1, 80, 8)
        for j in range(80):
            idx = (pos + wq_joff(j)) // 2
            img[idx[:, None] + np.arange(8)[None, :]] = u[:, j]
    return img
def o_c(ks, g, e8):
    oc, f = divmod(ks, 5); u = 8 * f + e8
    return 20 * (8 * oc + u // 5) + 5 * g + u % 5
def out_col(nt, t5, i):
    gd, r = divmod(i, 4)
    if t5 < 4: return 80 * nt + 32 * (t5 // 2) + 8 * gd + 4 * (t5 % 2) + r
    return 80 * nt + 64 + 4 * gd + r
OC = np.array([[[o_c(ks, g, e) for e in range(8)] for g in range(4)] for ks in range(20)])
assert sorted(OC.ravel()) == list(range(640))
OUTCOL = np.array([[[out_col(nt, t, i) for i in range(16)] for t in range(5)] for nt in range(8)])
def build_WO(M):
    u = f2bf(M); img = np.zeros((8, 20, 5, 4, 16, 8), np.uint16)
    for nt in range(8):
        for t in range(5):
            img[nt, :, t] = u[OC[:, :, None, :], OUTCOL[nt, t][None, None, :, None]]
    return img.ravel()
WO_POS = np.zeros(640, np.int64)
for nt in range(8):
    for t in range(5):
        for i in range(16): WO_POS[OUTCOL[nt, t, i]] = nt * 102400 + t * 1024 + i * 16
def build_WT(wr, wi):
    img = np.zeros((320, 8, 64, 4, 2), np.uint16)
    for a, ri in ((wr, 0), (wi, 1)):
        m = a[:, FREQ].reshape(8, 4, 64, 320)
        img[..., ri] = m.transpose(3, 0, 2, 1)
    return img.ravel()

def colpass(xh, ssq, wr, wi):
    r = (1 / np.sqrt(ssq / D + 1e-5) / 2048).astype(np.float32)
    u = rb(xh * r[:, None])
    uc = u[:, 0::2] + 1j * u[:, 1::2]; uc[:, 0] = uc[:, 0].real
    Wc = (wr + 1j * wi)[:, FREQ]
    rc = lambda z: rb(z.real) + 1j * rb(z.imag)
    N1, N2 = 64, 32
    n1 = np.arange(N1); n2 = np.arange(N2)
    F1 = rc(np.exp(-2j * np.pi * np.outer(n1, n1) / N1)); F2 = rc(np.exp(-2j * np.pi * np.outer(n2, n2) / N2))
    tw = np.exp(-2j * np.pi * np.outer(n2, n1) / S)
    a = uc.reshape(N1, N2, 320)
    d1 = rc(np.einsum('abc,ak->bkc', a, F1) * tw[:, :, None])
    d2 = rc(np.einsum('bkc,bj->jkc', d1, F2) * Wc.reshape(N2, N1, 320))
    d3 = rc(np.einsum('jkc,jm->mkc', d2, F2.conj()) * tw.conj()[:, :, None])
    y = np.einsum('mkc,ka->amc', d3, F1.conj()).reshape(S, 320)
    out = xh.copy()
    out[:, 0::2] += y.real.astype(np.float32); out[:, 3::2] += y.imag[:, 1:].astype(np.float32)
    return rb(out)
def ssq_of(xh):
    t = xh.astype(np.float64) ** 2
    return t.sum(1) - t[:, 1]
PQ_ORDER = np.array([[40 * t + d for d in list(range(0, 16)) + list(range(20, 36)) + [16, 17, 18, 19, 36, 37, 38, 39]] for t in range(16)]).ravel()
def qkv_phase(xh, Wp):
    r = (1 / np.sqrt(ssq_of(xh) / D + 1e-5)).astype(np.float32)
    qkv = (xh @ Wp.T) * r[:, None]
    q, k, v = qkv[:, :640], qkv[:, 640:1280], qkv[:, 1280:]
    phi = lambda t: np.where(t > 0, t + 1, np.exp(np.minimum(t, 0))) + 1e-6
    pq, pk, v = rb(phi(q)), rb(phi(k)).reshape(S, H, Dh), rb(v).reshape(S, H, Dh)
    kv = np.einsum('shd,she->hed', pk, v); z = pk.sum(0)
    kvs = np.zeros((32, 21, 24), np.float32)
    full = np.concatenate([z[:, None, :], kv], 1)
    kvs[:, :, :16] = full[:, :, :16]
    kvs[0::2, :, 16:20] = full[0::2, :, 16:]; kvs[1::2, :, 20:24] = full[1::2, :, 16:]
    return pq, kvs, full
def o_phase(pq, full):
    f = rb(full); p = pq.reshape(S, H, Dh)
    num = np.einsum('shd,hed->she', p, f[:, 1:]); den = np.einsum('shd,hd->sh', p, f[:, 0]) + 1e-6
    return rb(num / den[:, :, None]).reshape(S, D)
def expected(d):
    x0 = bf2f(d['A_x'])[0]; wr = bf2f(d['A_w_r']); wi = bf2f(d['A_w_i']); wqkv = bf2f(d['B_wqkv']); wo = bf2f(d['B_wo'])
    E = {}
    xh0 = rb(fft640(x0)); E['XH0'] = xh0
    x64 = x0.astype(np.float64); E['SSQ0'] = ((x64 ** 2).sum(1) - x64.sum(1) ** 2 / D)
    Wp = rb(fft640(wqkv.T.copy())); Wp[:, 1] = 0; E['Wp'] = Wp
    Fi = rb(fft640(np.eye(D, dtype=np.float32))); E['Fi'] = Fi
    wop = rb(fft640(wo)); E['wop'] = wop
    E['WQ'] = build_WQ(Wp, Fi); E['WOF'] = build_WO(wop); E['WOT'] = build_WO(wo); E['WT'] = build_WT(d['A_w_r'], d['A_w_i'])
    xh1 = colpass(xh0, E['SSQ0'], wr, wi); E['XH1'] = xh1
    pq, kvs, full = qkv_phase(xh1, Wp); E['PQ1'] = pq; E['KVS1'] = kvs
    o1 = o_phase(pq, full)
    xh2f = xh1 + o1 @ wop; xh2 = rb(xh2f); E['XH2'] = xh2; E['SSQ2'] = ssq_of(xh2f)
    xh3 = colpass(xh2, E['SSQ2'], wr, wi); E['XH3'] = xh3
    x3 = rb(xh3 @ Fi.T); E['X3'] = x3
    pq, kvs, full = qkv_phase(xh3, Wp); E['PQ2'] = pq; E['KVS2'] = kvs
    o2 = o_phase(pq, full)
    E['out'] = rb(x3 + o2 @ wo)
    return E
if __name__ == '__main__':
    d = np.load('ref0.npz'); E = expected(d)
    ref = bf2f(d['out'])[0]; ex = d['exact'][0]
    rel = lambda a, b: np.linalg.norm(a - b) / np.linalg.norm(b)
    print('vs exact', rel(E['out'], ex), 'vs ref', rel(E['out'], ref), 'WS_USED', WS_USED)
    print(T1table().shape, T2table().shape)
```

```python
import sys
from gen import *
import gen_k2
def main():
    upto = 7
    for a in sys.argv:
        if a.startswith('--upto='): upto = int(a.split('=')[1])
    bodies = [(gen_k1(), ['k1_kernel']), (gen_k2.gen_k2(), ['k2_kernel', 'k5_kernel'])]
    L = [('k1_kernel', 256, 256, K1_LDS), ('k2_kernel', 240, 512, gen_k2.K2_LDS)]
    try:
        import gen_k3
        bodies.append((gen_k3.gen_k3(False), ['k3_kernel'])); bodies.append((gen_k3.gen_k3(True), ['k6_kernel']))
        L.append(('k3_kernel', 256, 256, gen_k3.K3_LDS))
        import gen_k4
        bodies.append((gen_k4.gen_k4(), ['k4_kernel', 'k7_kernel']))
        L += [('k4_kernel', 256, gen_k4.K4_BLOCK, gen_k4.K4_LDS), ('k5_kernel', 184, 512, gen_k2.K2_LDS), ('k6_kernel', 256, 256, gen_k3.K6_LDS), ('k7_kernel', 256, gen_k4.K4_BLOCK, gen_k4.K4_LDS)]
    except ImportError as e:
        print('partial build:', e, file=sys.stderr)
        L.append(('k5_kernel', 184, 512, gen_k2.K2_LDS))
    L = L[:upto]
    used = {l[0] for l in L}
    bodies = [(k, n) for (k, n) in bodies if any(x in used for x in n)]
    out = 'diag.s' if DIAG else 'cdna_kernels/' + NAME + '.s'
    for a in sys.argv:
        if a.startswith('--out='): out = a.split('=')[1]
    open(out, 'w').write(build(L, bodies))
    for k, n in bodies: print(n, 'insts', len(k.out), 'regs', k.max_regs())
if __name__ == '__main__':
    main()
```

```python
import sys
import math
import numpy as np
from asmlib import Kern, fhex, vr, ar, sr
import maps as M

DIAG = '--diag' in sys.argv
NAME = 'interleave_layers__spectral_gfnet__linear_attn_block__prompt'

TAB_T1 = 0
TAB_T2 = 6144
TAB_WQW = TAB_T2 + 40960
TAB_WQI = TAB_WQW + 1920 * 4
TAB_WOP = TAB_WQI + 640 * 4
TAB_SLOT = TAB_WOP + 640 * 4
TAB_BYTES = TAB_SLOT + 324 * 4

WS, AUX, TAB, AUX2 = 's[4:7]', 's[8:11]', 's[12:15]', 's[16:19]'


def srd_from_arg(k, base, argoff, nbytes):
    k(f's_load_dwordx2 s[{base}:{base + 1}], s[0:1], {argoff}')
    k(f's_mov_b32 s{base + 2}, {nbytes}')
    k(f's_mov_b32 s{base + 3}, 0x20000')


def srd_tab(k):
    k('s_getpc_b64 s[12:13]')
    k('s_add_u32 s12, s12, tabs@rel32@lo+4')
    k('s_addc_u32 s13, s13, tabs@rel32@hi+12')
    k(f's_mov_b32 s14, {TAB_BYTES}')
    k('s_mov_b32 s15, 0x20000')


def stamp_start(k, kidx):
    if DIAG:
        k('s_memrealtime s[80:81]')
        k('s_memtime s[76:77]')
        k(f's_mov_b32 s94, {M.STAMP + kidx * 262144}')
        for n in range(1, 7):
            k(f's_mov_b32 s{80 + 2 * n}, 0')


def stamp(k, n):
    if DIAG:
        k(f's_memrealtime s[{80 + 2 * n}:{81 + 2 * n}]')
        k('s_waitcnt lgkmcnt(0)' if False else 's_nop 0')


def stamp_end(k, kidx):
    if DIAG:
        k('s_waitcnt vmcnt(0) lgkmcnt(0)')
        k('s_memrealtime s[98:99]')
        k('s_memtime s[78:79]')
        k('s_waitcnt lgkmcnt(0)')
        k('s_sub_u32 s78, s78, s76')
        k('v_mov_b32 v5, s78')
        for n in range(7):
            k(f'v_mov_b32 v{8 + n}, s{80 + 2 * n}')
        k('v_mov_b32 v15, s98')
        k('v_lshrrev_b32 v4, 6, v0')
        k('v_lshlrev_b32 v4, 6, v4')
        k('s_lshl_b32 s95, s2, 9')
        k(f's_add_u32 s95, s95, s94')
        k(f'buffer_store_dwordx4 v[8:11], v4, {WS}, s95 offen')
        k(f'buffer_store_dwordx4 v[12:15], v4, {WS}, s95 offen offset:16')
        k(f'buffer_store_dword v5, v4, {WS}, s95 offen offset:32')


def endk(k, kidx):
    stamp_end(k, kidx)
    k('s_endpgm')


XP = 1296
X_IMG = 16 * XP
E_BYTES = 20480


def fft640_tables(k, vl16, sw):
    for f in range(4):
        k(f'buffer_load_dwordx4 {ar(4 * f, 4)}, {vl16}, {TAB}, 0 offen offset:{1024 * f}')
    k('s_movk_i32 s30, 0x1000')
    for f in range(4, 6):
        k(f'buffer_load_dwordx4 {ar(4 * f, 4)}, {vl16}, {TAB}, s30 offen offset:{1024 * (f - 4)}')
    k(f's_mul_i32 s30, {sw}, 10240')
    k(f's_add_u32 s30, s30, {TAB_T2}')
    for f in range(10):
        if f and f % 4 == 0:
            k('s_add_u32 s30, s30, 4096')
        k(f'buffer_load_dwordx4 {vr(176 + 4 * f, 4)}, {vl16}, {TAB}, s30 offen offset:{1024 * (f % 4)}')


B0, B1, D1, PK = 40, 56, 72, 120


def fft640_core_from_rows(k, vA, vB):
    R = 16
    stamp(k, 2)
    for i in range(8):
        k(f'ds_read_b64 {vr(R + 2 * i, 2)}, {vA} offset:{512 * (i // 4) + 32 * (i % 4)}')
    for i in range(2):
        k(f'ds_read_b64 {vr(R + 16 + 2 * i, 2)}, {vB} offset:{32 * i}')
    k('s_mov_b32 s31, 0x05040100')
    k('s_mov_b32 s32, 0x07060302')
    for kk in range(5):
        for q in range(4):
            dst = B0 + 4 * q + kk if kk < 4 else B1 + 4 * q
            sel = 's31' if q % 2 == 0 else 's32'
            k(f'v_perm_b32 v{dst}, v{R + 2 * (2 * kk + 1) + q // 2}, v{R + 2 * (2 * kk) + q // 2}, {sel}')


def fft640_zero_b1(k, keep):
    stamp(k, 1)
    for q in range(4):
        for x in range(keep, 4):
            k(f'v_mov_b32 v{B1 + 4 * q + x}, 0')


def fft640_stage1(k, vEw):
    stamp(k, 3)
    for q in range(4):
        for t in range(3):
            d = vr(D1 + 12 * q + 4 * t, 4)
            k(f'v_mfma_f32_16x16x32_bf16 {d}, {ar(8 * t, 4)}, {vr(B0 + 4 * q, 4)}, 0')
    for q in range(4):
        for t in range(3):
            d = vr(D1 + 12 * q + 4 * t, 4)
            k(f'v_mfma_f32_16x16x32_bf16 {d}, {ar(8 * t + 4, 4)}, {vr(B1 + 4 * q, 4)}, {d}')
    for i in range(5):
        for ri in range(2):
            sg = 2 * i + ri
            for qq in range(2):
                k(f'v_cvt_pk_bf16_f32 v{PK + 4 * i + 2 * ri + qq}, v{D1 + 12 * (2 * qq) + sg}, v{D1 + 12 * (2 * qq + 1) + sg}')
        k(f'ds_write_b128 {vEw}, {vr(PK + 4 * i, 4)} offset:{1024 * i}')
    k('s_waitcnt lgkmcnt(0)')
    k('s_barrier')


FR, D2 = 16, 72


def fft640_stage2(k, vEr, swapped):
    stamp(k, 4)
    for i in range(5):
        k(f'ds_read_b128 {vr(FR + 4 * i, 4)}, {vEr} offset:{1024 * i}')
    for i in range(5):
        for t in range(2):
            d = vr(D2 + 8 * i + 4 * t, 4)
            T = vr(176 + 8 * i + 4 * t, 4)
            if swapped:
                k(f'v_mfma_f32_16x16x32_bf16 {d}, {vr(FR + 4 * i, 4)}, {T}, 0')
            else:
                k(f'v_mfma_f32_16x16x32_bf16 {d}, {T}, {vr(FR + 4 * i, 4)}, 0')


def fft640_store_normal(k, vout, sbase, bstep):
    stamp(k, 5)
    for i in range(5):
        for x in range(4):
            k(f'v_cvt_pk_bf16_f32 v{PK + 4 * i + x}, v{D2 + 8 * i + 2 * x}, v{D2 + 8 * i + 2 * x + 1}')
        k(f'buffer_store_dwordx4 {vr(PK + 4 * i, 4)}, {vout}, {WS}, {sbase} offen')
        if i < 4:
            k(f's_add_u32 {sbase}, {sbase}, {bstep}')


def touch_code2(k, vt):
    k('s_getpc_b64 s[52:53]')
    k('s_add_u32 s52, s52, k2_kernel@rel32@lo+4')
    k('s_addc_u32 s53, s53, k2_kernel@rel32@hi+12')
    k('s_mov_b32 s54, text_end-k2_kernel')
    k('s_mov_b32 s55, 0x20000')
    k('s_lshr_b32 s33, s2, 3')
    k('s_lshl_b32 s33, s33, 11')
    k(f'v_lshrrev_b32 {vt}, 5, v0')
    k(f'v_lshlrev_b32 {vt}, 24, {vt}')
    k(f'v_lshl_add_u32 {vt}, v0, 6, {vt}')
    k(f'buffer_load_dword {vt}, {vt}, s[52:55], s33 offen')


def touch_weights(k, vt, vd):
    k('s_mul_i32 s33, s2, 200')
    k(f'v_add_lshl_u32 {vt}, s33, v0, 6')
    k('v_cmp_gt_u32 vcc, 200, v0')
    k(f'v_mov_b32 {vd}, 0x40000000')
    k(f'v_cndmask_b32 {vt}, {vd}, {vt}, vcc')
    k(f'buffer_load_dword {vd}, {vt}, s[44:47], 0 offen')
    k(f'v_subrev_u32 {vt}, {640 * 3840}, {vt}')
    k(f'buffer_load_dword {vt}, {vt}, s[48:51], 0 offen')


K1_LDS = X_IMG + E_BYTES


def gen_k1():
    k = Kern()
    k('k1_kernel:')
    stamp_start(k, 0)
    k('s_cmp_ge_u32 s2, 256')
    k('s_cbranch_scc1 k1_exit')
    srd_from_arg(k, 4, 64, M.WS_USED)
    srd_from_arg(k, 44, 32, 640 * 3840)
    srd_from_arg(k, 48, 40, 640 * 1280)
    k('s_cmp_ge_u32 s2, 128')
    k('s_cbranch_scc1 k1_f')
    srd_from_arg(k, 8, 0, 2048 * 1280)
    srd_tab(k)
    k('v_and_b32 v1, 63, v0')
    k('v_lshrrev_b32 v2, 6, v0')
    k('v_readfirstlane_b32 s20, v2')
    k('v_lshrrev_b32 v3, 4, v0')
    k('v_and_b32 v4, 15, v0')
    k('s_lshl_b32 s21, s2, 4')
    k('s_mul_i32 s22, s21, 1280')
    k('v_mul_u32_u24 v5, 1280, v3')
    k('v_lshl_add_u32 v5, v4, 4, v5')
    k(f'v_mul_u32_u24 v6, {XP}, v3')
    k('v_lshl_add_u32 v6, v4, 4, v6')
    k('v_lshlrev_b32 v7, 4, v1')
    X = 140
    for i in range(5):
        k(f'buffer_load_dwordx4 {vr(X + 4 * i, 4)}, v5, {AUX}, s22 offen offset:{256 * i}')
    fft640_tables(k, 'v7', 's20')
    touch_code2(k, 'v162')
    k('v_lshrrev_b32 v8, 4, v1')
    k(f'v_mul_u32_u24 v9, {XP}, v4')
    k('s_lshl_b32 s23, s20, 3')
    k('v_add_u32 v9, s23, v9')
    k('v_lshl_add_u32 v10, v8, 7, v9')
    k('v_lshl_add_u32 v11, v8, 6, v9')
    k('v_add_u32 v11, 1024, v11')
    k('v_mul_u32_u24 v12, 5120, v8')
    k('v_lshl_add_u32 v12, v4, 4, v12')
    k('s_lshl_b32 s23, s20, 8')
    k(f's_add_u32 s23, s23, {X_IMG}')
    k('v_add_u32 v12, s23, v12')
    k('s_mul_i32 s23, s20, 5120')
    k(f's_add_u32 s23, s23, {X_IMG}')
    k('v_add_u32 v13, s23, v7')
    k('v_lshlrev_b32 v14, 11, v8')
    k('v_lshl_add_u32 v14, v4, 4, v14')
    k(f's_mul_i32 s24, s20, {5 * 4 * 2048}')
    k('s_lshr_b32 s23, s2, 3')
    k(f's_mul_i32 s23, s23, {M.TS}')
    k('s_add_u32 s24, s24, s23')
    k('s_and_b32 s23, s2, 7')
    k('s_lshl_b32 s23, s23, 8')
    k('s_add_u32 s24, s24, s23')
    k(f's_add_u32 s24, s24, {M.XH0}')
    fft640_zero_b1(k, 1)
    k('v_mov_b32 v36, 0')
    k('v_mov_b32 v37, 0')
    k('v_mov_b32 v38, 0x3f803f80')
    for i in range(5):
        k(f'ds_write_b128 v6, {vr(X + 4 * i, 4)} offset:{256 * i}')
    k('s_waitcnt lgkmcnt(0)')
    k('s_barrier')
    fft640_core_from_rows(k, 'v10', 'v11')
    touch_weights(k, 'v160', 'v161')
    fft640_stage1(k, 'v12')
    fft640_stage2(k, 'v13', False)
    fft640_store_normal(k, 'v14', 's24', 4 * 2048)
    for i in range(20):
        k(f'v_dot2_f32_bf16 v36, v{X + i}, v{X + i}, v36')
        k(f'v_dot2_f32_bf16 v37, v{X + i}, v38, v37')
    for sh in (8, 4, 2, 1):
        k(f'v_add_f32_dpp v36, v36, v36 row_ror:{sh} row_mask:0xf bank_mask:0xf')
        k(f'v_add_f32_dpp v37, v37, v37 row_ror:{sh} row_mask:0xf bank_mask:0xf')
    k(f'v_mul_f32 v38, {fhex(-1.0 / 640)}, v37')
    k('v_fmac_f32 v36, v38, v37')
    k('v_add_u32 v39, s21, v3')
    k('v_lshlrev_b32 v39, 2, v39')
    k(f's_mov_b32 s25, {M.SSQ0}')
    k(f'buffer_store_dword v36, v39, {WS}, s25 offen')
    endk(k, 0)
    k('k1_f:')
    srd_from_arg(k, 8, 8, 2048 * 642)
    srd_from_arg(k, 16, 16, 2048 * 642)
    srd_tab(k)
    k('s_sub_u32 s20, s2, 128')
    k('s_lshr_b32 s21, s20, 3')
    k('s_and_b32 s22, s20, 7')
    k('s_lshl_b32 s23, s22, 8')
    k('s_lshl_b32 s24, s21, 2')
    k('s_add_u32 s23, s23, s24')
    k('s_mul_i32 s23, s23, 642')
    k('v_lshlrev_b32 v1, 4, v0')
    k('v_cmp_gt_u32 vcc, 161, v0')
    k('v_mov_b32 v2, 0x40000000')
    k('v_cndmask_b32 v2, v2, v1, vcc')
    CH = 2576
    for r in range(4):
        k(f'buffer_load_dwordx4 {vr(16 + 4 * r, 4)}, v2, {AUX}, s23 offen')
        k(f'buffer_load_dwordx4 {vr(32 + 4 * r, 4)}, v2, {AUX2}, s23 offen')
        if r < 3:
            k(f's_add_u32 s23, s23, {64 * 642}')
    k('v_lshrrev_b32 v3, 2, v0')
    k('v_and_b32 v4, 3, v0')
    k('v_lshlrev_b32 v5, 2, v3')
    k(f's_mov_b32 s25, {TAB_SLOT + 4}')
    for i in range(5):
        k(f'buffer_load_dword v{48 + i}, v5, {TAB}, s25 offen offset:{256 * i}')
    touch_code2(k, 'v13')
    ZB = M.ZERO_END - M.ZERO_START
    per = (ZB + 127) // 128
    assert per <= 4096 and per % 16 == 0, per
    k('v_mov_b32 v8, 0')
    k('v_mov_b32 v9, 0')
    k('v_mov_b32 v10, 0')
    k('v_mov_b32 v11, 0')
    k(f'v_cmp_gt_u32 vcc, {per // 16}, v0')
    k('v_mov_b32 v6, 0x40000000')
    k('v_cndmask_b32 v6, v6, v1, vcc')
    k(f's_mul_i32 s26, s20, {per}')
    k(f's_add_u32 s26, s26, {M.ZERO_START}')
    k(f'buffer_store_dwordx4 v[8:11], v6, {WS}, s26 offen')
    k('v_cmp_gt_u32 vcc, 161, v0')
    k('s_and_saveexec_b64 s[28:29], vcc')
    for r in range(4):
        k(f'ds_write_b128 v1, {vr(16 + 4 * r, 4)} offset:{CH * r}')
        k(f'ds_write_b128 v1, {vr(32 + 4 * r, 4)} offset:{CH * (4 + r)}')
    k('s_mov_b64 exec, s[28:29]')
    k('v_mul_u32_u24 v12, 642, v4')
    k('v_lshl_add_u32 v12, v3, 1, v12')
    k('s_lshl_b32 s27, s22, 6')
    k('s_add_u32 s27, s27, s24')
    k('s_lshl_b32 s27, s27, 4')
    k(f's_add_u32 s27, s27, {M.WT}')
    k('s_waitcnt lgkmcnt(0)')
    k('s_barrier')
    touch_weights(k, 'v14', 'v15')
    for i in range(5):
        for r in range(4):
            k(f'ds_read_u16 v{64 + 4 * i + r}, v12 offset:{CH * r + 2 + 128 * i}')
            k(f'ds_read_u16 v{84 + 4 * i + r}, v12 offset:{CH * (4 + r) + 2 + 128 * i}')
    for i in range(5):
        for r in range(4):
            k(f'v_lshl_or_b32 v{64 + 4 * i + r}, v{84 + 4 * i + r}, 16, v{64 + 4 * i + r}')
        k(f'v_lshl_add_u32 v{48 + i}, v4, 4, v{48 + i}')
        k(f'buffer_store_dwordx4 {vr(64 + 4 * i, 4)}, v{48 + i}, {WS}, s27 offen')
    endk(k, 0)
    k('k1_exit:')
    k('s_endpgm')
    return k


def tables_asm():
    T1 = M.T1table().ravel().view(np.uint32)
    T2 = M.T2table().ravel().view(np.uint32)
    slot = np.zeros(324, np.uint32)
    for cs in range(320):
        slot[M.FREQ[cs]] = cs * 8192
    allw = np.concatenate([T1, T2, M.WQ_POS_W.astype(np.uint32), M.WQ_POS_I.astype(np.uint32), M.WO_POS.astype(np.uint32), slot])
    assert allw.size * 4 == TAB_BYTES, (allw.size * 4, TAB_BYTES)
    s = '.p2align 8\ntabs:\n'
    for i in range(0, allw.size, 8):
        s += '.long ' + ','.join('0x%x' % x for x in allw[i:i + 8]) + '\n'
    return s


def descriptor(name, k, nvgpr=None):
    mv, ma, ms = k.max_regs()
    acc = max(4, (mv + 3) // 4 * 4)
    nfv = acc + ma if ma > 0 else mv
    return f'''.p2align 6
.amdhsa_kernel {name}
  .amdhsa_next_free_vgpr {nfv}
  .amdhsa_next_free_sgpr {max(ms, 8)}
  .amdhsa_accum_offset {acc}
  .amdhsa_group_segment_fixed_size 0
  .amdhsa_kernarg_size 72
  .amdhsa_user_sgpr_count 2
  .amdhsa_user_sgpr_kernarg_segment_ptr 1
  .amdhsa_system_sgpr_workgroup_id_x 1
.end_amdhsa_kernel
'''


def build(launches, bodies):
    hdr = open('cdna_kernels/' + NAME + '.s.ref').read().split('; Override')[0]
    s = hdr
    for (kn, g, b, lds) in launches:
        s += f'; @launch kernel={kn} grid=({g},1,1) block=({b},1,1) lds={lds}\n'
    s += '.amdgcn_target "amdgcn-amd-amdhsa--gfx950"\n.text\n'
    desc = ''
    for (k, names) in bodies:
        txt = k.finish()
        for n in names:
            txt = txt.replace(f'{n}:\n', f'.globl {n}\n.p2align 8\n.type {n},@function\n{n}:\n')
            desc += descriptor(n, k)
        s += txt
    s += 'text_end:\n.section .rodata,"a"\n' + desc + tables_asm()
    return s


if __name__ == '__main__':
    import gen_all
    gen_all.main()
```

```python
from gen import *

CM_IMG = 640 * 64 + 40 * 32
K2_LDS = max(32768, CM_IMG + 2 * E_BYTES, 2 * (X_IMG + E_BYTES))


def cmul(k, RE, IM, C, Sn, T0, T1, P, conj_tw, swap_out):
    n0, n1 = ('', '-') if conj_tw else ('-', '')
    for r in range(4):
        k(f'v_mul_f32 v{T0 + r}, v{RE + r}, v{C + r}')
        k(f'v_mul_f32 v{T1 + r}, v{IM + r}, v{C + r}')
    for r in range(4):
        k(f'v_fma_f32 v{T0 + r}, {n0}v{IM + r}, v{Sn + r}, v{T0 + r}')
        k(f'v_fma_f32 v{T1 + r}, {n1}v{RE + r}, v{Sn + r}, v{T1 + r}')
    for r in range(4):
        if swap_out:
            k(f'v_cvt_pk_bf16_f32 v{P + r}, v{T1 + r}, v{T0 + r}')
        else:
            k(f'v_cvt_pk_bf16_f32 v{P + r}, v{T0 + r}, v{T1 + r}')


def gen_k2():
    k = Kern()
    k('k2_kernel:')
    stamp_start(k, 1)
    k(f's_mov_b32 s40, {M.XH0}')
    k(f's_mov_b32 s41, {M.XH1}')
    k(f's_mov_b32 s42, {M.SSQ0}')
    srd_from_arg(k, 4, 64, M.WS_USED)
    k('s_cmp_lt_u32 s2, 160')
    k('s_cbranch_scc1 k2_col')
    k('s_cmp_lt_u32 s2, 220')
    k('s_cbranch_scc1 k2_b')
    k('s_cmp_lt_u32 s2, 240')
    k('s_cbranch_scc1 k2_c')
    k('s_endpgm')
    k('k5_kernel:')
    stamp_start(k, 4)
    k(f's_mov_b32 s40, {M.XH2}')
    k(f's_mov_b32 s41, {M.XH3}')
    k(f's_mov_b32 s42, {M.SSQ2}')
    srd_from_arg(k, 4, 64, M.WS_USED)
    k('s_cmp_lt_u32 s2, 160')
    k('s_cbranch_scc1 k2_col')
    k('s_cmp_lt_u32 s2, 180')
    k('s_cbranch_scc1 k2_i')
    k('s_endpgm')
    k('k2_col:')
    k('v_and_b32 v1, 63, v0')
    k('v_and_b32 v2, 15, v0')
    k('v_bfe_u32 v3, v0, 4, 2')
    k('v_lshrrev_b32 v4, 6, v0')
    k('v_readfirstlane_b32 s20, v4')
    k('s_and_b32 s21, s20, 3')
    k('s_lshr_b32 s22, s20, 2')
    k('s_and_b32 s23, s2, 7')
    k('s_lshr_b32 s24, s2, 4')
    k('s_lshl_b32 s24, s24, 3')
    k('s_add_u32 s23, s23, s24')
    k('s_bfe_u32 s24, s2, 0x10003')
    k('v_lshlrev_b32 v7, 9, v3')
    k('v_lshl_add_u32 v7, v2, 2, v7')
    k('s_lshl_b32 s25, s21, 11')
    k('s_lshl_b32 s26, s22, 6')
    k('s_add_u32 s25, s25, s26')
    k('s_add_u32 s42, s42, s25')
    k(f's_mov_b32 s25, {M.TS}')
    k('v_mul_lo_u32 v6, v3, s25')
    k('v_lshl_add_u32 v6, v2, 4, v6')
    k('s_lshl_b32 s26, s23, 11')
    k('s_lshl_b32 s27, s24, 3')
    k('s_add_u32 s26, s26, s27')
    k(f's_mul_i32 s27, s21, {4 * M.TS}')
    k('s_add_u32 s26, s26, s27')
    k('s_lshl_b32 s27, s22, 8')
    k('s_add_u32 s26, s26, s27')
    k('s_add_u32 s27, s26, s41')
    k('s_add_u32 s26, s26, s40')
    k('s_lshl_b32 s28, s23, 2')
    k('s_lshl_b32 s29, s24, 1')
    k('s_add_u32 s28, s28, s29')
    k('s_add_u32 s28, s28, s22')
    k('s_lshl_b32 s28, s28, 13')
    k(f's_add_u32 s28, s28, {M.WT}')
    k('s_add_u32 s29, s28, 4096')
    k('s_lshl_b32 s30, s21, 4')
    k('v_add_u32 v28, s30, v2')
    k('v_lshl_add_u32 v29, v3, 6, v28')
    k('v_lshlrev_b32 v29, 4, v29')
    XR, SQ, WR = 8, 16, 20
    for r in range(4):
        k(f'buffer_load_dwordx2 {vr(XR + 2 * r, 2)}, v6, {WS}, s26 offen offset:{512 * r}')
    for r in range(4):
        k(f'buffer_load_dword v{SQ + r}, v7, {WS}, s42 offen offset:{128 * r}')
    k(f'buffer_load_dwordx4 {vr(WR, 4)}, v29, {WS}, s28 offen')
    k(f'buffer_load_dwordx4 {vr(WR + 4, 4)}, v29, {WS}, s29 offen')
    k('s_cmp_eq_u32 s2, 0')
    k('s_cselect_b32 s31, 0xffff, -1')
    C1R, C1I, C2R, C2I, T1C, T1S, T2C, T2S = 32, 48, 64, 80, 96, 104, 112, 120
    XF, DA, DB, P, TA, TB, WFR, WFI = 128, 144, 160, 176, 184, 192, 200, 208
    stamp(k, 1)
    k('v_cvt_f32_u32 v30, v28')
    k(f'v_mul_f32 v30, {fhex(1 / 64)}, v30')
    k('v_cvt_f32_u32 v31, v3')
    k('v_mul_f32 v31, 4.0, v31')
    k(f'v_mul_f32 v{TA}, v31, v30')
    for t in range(4):
        for r in range(4):
            i = 4 * t + r
            an, tc, ts = TA + 1 + (i % 2), TA + 3 + (i % 2), TA + 5 + (i % 2)
            if i == 0:
                k(f'v_mov_b32 v{an}, v{TA}')
            else:
                k(f'v_fmamk_f32 v{an}, v30, {fhex(16 * t + r)}, v{TA}')
            k(f'v_cos_f32 v{tc}, v{an}')
            k(f'v_sin_f32 v{ts}, v{an}')
            k(f'v_cvt_pk_bf16_f32 v{C1R + i}, v{tc}, v{ts}')
            k(f'v_cvt_pk_bf16_f32 v{C1I + i}, -v{ts}, v{tc}')
    k(f'v_mul_f32 v30, {fhex(1 / 32)}, v30')
    k(f'v_mul_f32 v{TA}, {fhex(1 / 32)}, v{TA}')
    for T in range(2):
        for r in range(4):
            i = 4 * T + r
            an = TA + 1 + (i % 2)
            if i == 0:
                k(f'v_mov_b32 v{an}, v{TA}')
            else:
                k(f'v_fmamk_f32 v{an}, v30, {fhex(16 * T + r)}, v{TA}')
            k(f'v_cos_f32 v{T1C + i}, v{an}')
            k(f'v_sin_f32 v{T1S + i}, v{an}')
    k('v_cvt_f32_u32 v30, v2')
    k(f'v_mul_f32 v30, {fhex(1 / 32)}, v30')
    k(f'v_mul_f32 v{TA}, v31, v30')
    k(f'v_and_b32 v{TB}, 1, v2')
    k('s_mov_b32 s32, 0x80008000')
    k(f'v_mul_lo_u32 v{TB}, v{TB}, s32')
    k(f'v_xor_b32 v{TB + 1}, s32, v{TB}')
    for r in range(4):
        an, tc, ts = TA + 1 + (r % 2), TA + 3 + (r % 2), TA + 5 + (r % 2)
        if r == 0:
            k(f'v_mov_b32 v{an}, v{TA}')
        else:
            k(f'v_fmamk_f32 v{an}, v30, {fhex(r)}, v{TA}')
        k(f'v_cos_f32 v{tc}, v{an}')
        k(f'v_sin_f32 v{ts}, v{an}')
        k(f'v_cvt_pk_bf16_f32 v{C2R + r}, v{tc}, v{ts}')
        k(f'v_cvt_pk_bf16_f32 v{C2I + r}, -v{ts}, v{tc}')
        for B in (C2R, C2I):
            k(f'v_xor_b32 v{B + 4 + r}, v{B + r}, v{TB}')
            if r % 2 == 0:
                k(f'v_mov_b32 v{B + 8 + r}, v{B + r}')
                k(f'v_xor_b32 v{B + 12 + r}, v{B + r}, v{TB}')
            else:
                k(f'v_xor_b32 v{B + 8 + r}, s32, v{B + r}')
                k(f'v_xor_b32 v{B + 12 + r}, v{B + r}, v{TB + 1}')
    k(f'v_cvt_f32_u32 v{TB + 2}, s30')
    k(f'v_add_f32 v31, v31, v{TB + 2}')
    k(f'v_mul_f32 v30, {fhex(1 / 64)}, v30')
    for Tm in range(2):
        if Tm == 1:
            k(f'v_add_f32 v30, {fhex(16 / 2048)}, v30')
        k(f'v_mul_f32 v{TA}, v31, v30')
        for r in range(4):
            i = 4 * Tm + r
            an = TA + 1 + (i % 2)
            if r == 0:
                k(f'v_mov_b32 v{an}, v{TA}')
            else:
                k(f'v_fmamk_f32 v{an}, v30, {fhex(r)}, v{TA}')
            k(f'v_cos_f32 v{T2C + i}, v{an}')
            k(f'v_sin_f32 v{T2S + i}, v{an}')
    k('v_lshlrev_b32 v4, 4, v1')
    k('s_lshl_b32 s33, s20, 10')
    k('v_add_u32 v5, s33, v4')
    k('s_lshl_b32 s33, s22, 13')
    k('v_add_u32 v7, s33, v4')
    k('s_lshl_b32 s34, s21, 10')
    k('s_add_u32 s34, s34, s33')
    k('v_add_u32 v28, s34, v4')
    k('s_lshl_b32 s33, s22, 12')
    k('v_add_u32 v29, s33, v4')
    stamp(k, 2)
    k(f's_mov_b32 s35, {fhex(2.0 ** 22 / 640)}')
    k(f'v_mov_b32 v30, {fhex(1e-5 * 2.0 ** 22)}')
    for r in range(4):
        k(f'v_fma_f32 v{SQ + r}, v{SQ + r}, s35, v30')
        k(f'v_rsq_f32 v{SQ + r}, v{SQ + r}')
    for c in range(2):
        for r in range(4):
            k(f'v_lshlrev_b32 v{XF + 8 * c + r}, 16, v{XR + 2 * r + c}')
            k(f'v_and_b32 v{XF + 8 * c + 4 + r}, 0xffff0000, v{XR + 2 * r + c}')
        for h in range(2):
            k(f'v_pk_mul_f32 {vr(TA + 2 * h, 2)}, {vr(XF + 8 * c + 2 * h, 2)}, {vr(SQ + 2 * h, 2)}')
            k(f'v_pk_mul_f32 {vr(TA + 4 + 2 * h, 2)}, {vr(XF + 8 * c + 4 + 2 * h, 2)}, {vr(SQ + 2 * h, 2)}')
        for r in range(4):
            k(f'v_cvt_pk_bf16_f32 v{P + 4 * c + r}, v{TA + r}, v{TA + 4 + r}')
            if c == 0:
                k(f'v_and_b32 v{P + r}, s31, v{P + r}')
        k(f'ds_write_b128 v5, {vr(P + 4 * c, 4)} offset:{8192 * c}')
    k('s_waitcnt lgkmcnt(0)')
    k('s_barrier')
    stamp(k, 3)
    for t in range(4):
        for T in range(2):
            k(f'ds_read_b128 {ar(16 * T + 4 * t, 4)}, v7 offset:{4096 * T + 1024 * t}')
    for i in range(8):
        k(f'v_lshlrev_b32 v{WFR + i}, 16, v{WR + i}')
        k(f'v_and_b32 v{WFI + i}, 0xffff0000, v{WR + i}')
    mf = 'v_mfma_f32_16x16x32_bf16'
    for t in range(4):
        for T in range(2):
            for (C, o) in ((C1R, 0), (C1I, 8)):
                d = vr(DA + o + 4 * T, 4)
                k(f'{mf} {d}, {ar(16 * T + 4 * t, 4)}, {vr(C + 4 * t, 4)}, {d if t else 0}')
    for T in range(2):
        cmul(k, DA + 4 * T, DA + 8 + 4 * T, T1C + 4 * T, T1S + 4 * T, TA, TA + 4, P + 4 * T, True, False)
    for T in range(2):
        for Tp in range(2):
            for (C, o) in ((C2R, 0), (C2I, 8)):
                d = vr(DB + o + 4 * Tp, 4)
                k(f'{mf} {d}, {vr(C + 8 * Tp + 4 * T, 4)}, {vr(P + 4 * T, 4)}, {d if T else 0}')
    for Tp in range(2):
        cmul(k, DB + 4 * Tp, DB + 8 + 4 * Tp, WFR + 4 * Tp, WFI + 4 * Tp, TA, TA + 4, TB + 4 * Tp, False, True)
    stamp(k, 4)
    for Tp in range(2):
        for Tm in range(2):
            for (C, o) in ((C2I, 0), (C2R, 8)):
                d = vr(DA + o + 4 * Tm, 4)
                k(f'{mf} {d}, {vr(TB + 4 * Tp, 4)}, {vr(C + 8 * Tm + 4 * Tp, 4)}, {d if Tp else 0}')
    for Tm in range(2):
        cmul(k, DA + 4 * Tm, DA + 8 + 4 * Tm, T2C + 4 * Tm, T2S + 4 * Tm, TA, TA + 4, P + 4 * Tm, False, True)
        k(f'ds_write_b128 v28, {vr(P + 4 * Tm, 4)} offset:{16384 + 4096 * Tm}')
    k('s_waitcnt lgkmcnt(0)')
    k('s_barrier')
    stamp(k, 5)
    for t in range(4):
        for c in range(2):
            k(f'ds_read_b128 {ar(16 * c + 4 * t, 4)}, v29 offset:{16384 + 8192 * c + 1024 * t}')
    for t in range(4):
        for c in range(2):
            for (C, o) in ((C1I, 0), (C1R, 4)):
                d = vr(XF + 8 * c + o, 4)
                k(f'{mf} {d}, {vr(C + 4 * t, 4)}, {ar(16 * c + 4 * t, 4)}, {d}')
    stamp(k, 6)
    for r in range(4):
        for c in range(2):
            k(f'v_cvt_pk_bf16_f32 v{P + 2 * r + c}, v{XF + 8 * c + r}, v{XF + 8 * c + 4 + r}')
        k(f'v_bfi_b32 v{P + 2 * r}, s31, v{P + 2 * r}, v{XR + 2 * r}')
        k(f'buffer_store_dwordx2 {vr(P + 2 * r, 2)}, v6, {WS}, s27 offen offset:{512 * r}')
    endk(k, 1)

    def cm_common(is_id):
        srd_tab(k)
        k('v_and_b32 v1, 63, v0')
        k('v_lshrrev_b32 v2, 6, v0')
        k('v_readfirstlane_b32 s21, v2')
        k('s_and_b32 s20, s21, 3')
        k('s_lshr_b32 s22, s21, 2')
        k('s_sub_u32 s23, s2, 160')
        k('v_lshrrev_b32 v3, 2, v0')
        k('v_and_b32 v4, 3, v0')
        k('v_lshlrev_b32 v7, 4, v1')
        k('v_lshrrev_b32 v6, 4, v3')
        k('v_lshlrev_b32 v6, 5, v6')
        k('v_lshl_add_u32 v6, v3, 6, v6')
        k('v_lshl_add_u32 v6, v4, 4, v6')
        X = 140
        if not is_id:
            k('v_mul_u32_u24 v5, 3840, v3')
            k('v_lshl_add_u32 v5, v4, 4, v5')
            k('s_lshl_b32 s24, s23, 6')
            for i in range(5):
                k(f'buffer_load_dwordx4 {vr(X + 4 * i, 4)}, v5, {AUX}, s24 offen')
                if i < 4:
                    k(f's_add_u32 s24, s24, {128 * 3840}')
        fft640_tables(k, 'v7', 's20')
        k('v_and_b32 v15, 15, v0')
        k('v_lshrrev_b32 v8, 4, v1')
        k('s_lshl_b32 s25, s23, 5')
        k('s_lshl_b32 s26, s22, 4')
        k('s_add_u32 s25, s25, s26')
        k('v_add_lshl_u32 v9, s25, v15, 2')
        k(f's_mov_b32 s26, {TAB_WQI if is_id else TAB_WQW}')
        k(f'buffer_load_dword v14, v9, {TAB}, s26 offen')
        k('v_bfe_u32 v9, v0, 2, 2')
        k('v_lshl_add_u32 v10, v8, 2, v9')
        k('v_mul_u32_u24 v10, 1056, v10')
        k('v_lshl_add_u32 v10, v4, 3, v10')
        k('s_lshl_b32 s26, s20, 8')
        k('s_lshl_b32 s27, s22, 5')
        k('s_add_u32 s26, s26, s27')
        k('v_add_u32 v10, s26, v10')
        k('v_and_b32 v9, 1, v9')
        k('v_lshl_add_u32 v11, v8, 1, v9')
        k('v_mul_u32_u24 v11, 1056, v11')
        k('v_lshl_add_u32 v11, v4, 3, v11')
        k(f's_add_u32 s26, s26, {32 * 1056}')
        k('v_add_u32 v11, s26, v11')
        k(f's_mul_i32 s27, s22, {E_BYTES}')
        k(f's_add_u32 s27, s27, {CM_IMG}')
        k('v_mul_u32_u24 v12, 5120, v8')
        k('v_lshl_add_u32 v12, v15, 4, v12')
        k('s_lshl_b32 s26, s20, 8')
        k('s_add_u32 s26, s26, s27')
        k('v_add_u32 v12, s26, v12')
        k('s_mul_i32 s26, s20, 5120')
        k('s_add_u32 s26, s26, s27')
        k('v_add_u32 v13, s26, v7')
        k(f's_mul_i32 s24, s20, {5 * 10240}')
        k(f's_add_u32 s24, s24, {M.WQ}')
        fft640_zero_b1(k, 2)
        if is_id:
            for x in range(4):
                k(f'v_mov_b32 v{X + x}, 0')
            for i in range(5):
                k(f'ds_write_b128 v6, {vr(X, 4)} offset:{8448 * i}')
            k('s_waitcnt lgkmcnt(0)')
            k('s_barrier')
            k('s_lshl_b32 s26, s23, 5')
            k('v_add_u32 v20, s26, v0')
            k('v_lshrrev_b32 v21, 4, v20')
            k('v_lshlrev_b32 v21, 5, v21')
            k('v_lshl_add_u32 v21, v20, 6, v21')
            k('v_lshl_add_u32 v21, v0, 1, v21')
            k('v_mov_b32 v22, 0x3f80')
            k('v_cmp_gt_u32 vcc, 32, v0')
            k('s_and_saveexec_b64 s[28:29], vcc')
            k('ds_write_b16 v21, v22')
            k('s_mov_b64 exec, s[28:29]')
        else:
            for i in range(5):
                k(f'ds_write_b128 v6, {vr(X + 4 * i, 4)} offset:{8448 * i}')
        k('s_waitcnt lgkmcnt(0)')
        k('s_barrier')
        for q in range(4):
            k(f'ds_read_b64_tr_b16 {vr(B0 + 4 * q, 2)}, v10 offset:{64 * q}')
            k(f'ds_read_b64_tr_b16 {vr(B0 + 4 * q + 2, 2)}, v10 offset:{64 * q + 16 * 1056}')
            k(f'ds_read_b64_tr_b16 {vr(B1 + 4 * q, 2)}, v11 offset:{64 * q}')
        k('v_lshrrev_b32 v9, 1, v8')
        k('v_mul_u32_u24 v9, 5120, v9')
        k('v_and_b32 v8, 1, v8')
        k('v_lshl_add_u32 v9, v8, 9, v9')
        k('v_add_u32 v14, v14, v9')
        fft640_stage1(k, 'v12')
        fft640_stage2(k, 'v13', False)
        if not is_id:
            k('s_cmp_eq_u32 s20, 0')
            k('s_cselect_b32 s26, 16, 0')
            k('v_cmp_gt_u32 vcc, s26, v1')
            k(f'v_cndmask_b32 v{D2 + 1}, v{D2 + 1}, 0, vcc' if False else f'v_mov_b32 v20, 0')
            k(f'v_cndmask_b32 v{D2 + 1}, v{D2 + 1}, v20, vcc')
        fft640_store_normal(k, 'v14', 's24', 10240)
        endk(k, 1)

    k('k2_b:')
    srd_from_arg(k, 8, 32, 640 * 3840)
    cm_common(False)
    k('k2_i:')
    cm_common(True)

    k('k2_c:')
    srd_from_arg(k, 8, 40, 640 * 1280)
    srd_tab(k)
    k('v_and_b32 v1, 63, v0')
    k('v_lshrrev_b32 v2, 6, v0')
    k('v_readfirstlane_b32 s21, v2')
    k('s_and_b32 s20, s21, 3')
    k('s_lshr_b32 s22, s21, 2')
    k('s_sub_u32 s23, s2, 220')
    k('s_mul_i32 s24, s23, 52')
    k('s_lshr_b32 s24, s24, 8')
    k('s_mul_i32 s25, s24, 5')
    k('s_sub_u32 s25, s23, s25')
    k('v_bfe_u32 v3, v0, 4, 4')
    k('v_and_b32 v4, 15, v0')
    k('v_and_b32 v5, 7, v3')
    k('s_lshl_b32 s25, s25, 3')
    k('v_add_u32 v5, s25, v5')
    k('v_mul_u32_u24 v6, 52, v5')
    k('v_lshrrev_b32 v6, 8, v6')
    k('v_mul_u32_u24 v6, 15, v6')
    k('v_add_u32 v5, v5, v6')
    k('v_lshrrev_b32 v6, 3, v3')
    k('v_mul_u32_u24 v6, 5, v6')
    k('v_add_u32 v5, v5, v6')
    k('s_mul_i32 s24, s24, 160')
    k('s_mul_i32 s25, s22, 10')
    k('s_add_u32 s24, s24, s25')
    k('v_add_u32 v5, s24, v5')
    k('v_mul_u32_u24 v5, 1280, v5')
    k('v_lshl_add_u32 v5, v4, 4, v5')
    X = 140
    for i in range(5):
        k(f'buffer_load_dwordx4 {vr(X + 4 * i, 4)}, v5, {AUX}, 0 offen offset:{256 * i}')
    k('v_lshlrev_b32 v7, 4, v1')
    fft640_tables(k, 'v7', 's20')
    k(f's_mul_i32 s27, s22, {X_IMG + E_BYTES}')
    k(f'v_mul_u32_u24 v6, {XP}, v3')
    k('v_lshl_add_u32 v6, v4, 4, v6')
    k('v_add_u32 v6, s27, v6')
    k('v_lshrrev_b32 v8, 4, v1')
    k('v_lshrrev_b32 v9, 2, v4')
    k('v_lshlrev_b32 v9, 3, v9')
    k('v_and_b32 v10, 3, v4')
    k('v_add_lshl_u32 v9, v9, v10, 2')
    k('s_mul_i32 s26, s20, 640')
    k(f's_add_u32 s26, s26, {TAB_WOP}')
    POS = 160
    for i in range(5):
        for t in range(2):
            k(f'buffer_load_dword v{POS + 2 * i + t}, v9, {TAB}, s26 offen offset:{128 * i + 16 * t}')
    k('v_lshrrev_b32 v9, 1, v8')
    k('v_lshl_add_u32 v9, v9, 4, v4')
    k('v_lshlrev_b32 v10, 2, v9')
    for i in range(5):
        k(f'buffer_load_dword v{POS + 10 + i}, v10, {TAB}, s26 offen offset:{128 * i}')
    k(f'v_mul_u32_u24 v9, {XP}, v4')
    k('s_lshl_b32 s26, s20, 3')
    k('s_add_u32 s26, s26, s27')
    k('v_add_u32 v9, s26, v9')
    k('v_lshl_add_u32 v10, v8, 7, v9')
    k('v_lshl_add_u32 v11, v8, 6, v9')
    k('v_add_u32 v11, 1024, v11')
    k('v_mul_u32_u24 v12, 5120, v8')
    k('v_lshl_add_u32 v12, v4, 4, v12')
    k('s_lshl_b32 s26, s20, 8')
    k('s_add_u32 s26, s26, s27')
    k(f's_add_u32 s26, s26, {X_IMG}')
    k('v_add_u32 v12, s26, v12')
    k('s_mul_i32 s26, s20, 5120')
    k('s_add_u32 s26, s26, s27')
    k(f's_add_u32 s26, s26, {X_IMG}')
    k('v_add_u32 v13, s26, v7')
    k('v_and_b32 v14, 1, v8')
    k('v_bfe_u32 v15, v0, 2, 2')
    k('v_lshl_add_u32 v15, v14, 3, v15')
    k(f'v_mul_u32_u24 v15, {XP}, v15')
    k('v_and_b32 v36, 3, v0')
    k('v_lshl_add_u32 v15, v36, 3, v15')
    k('v_lshrrev_b32 v36, 1, v8')
    k('v_lshl_add_u32 v15, v36, 5, v15')
    k('s_mul_i32 s26, s20, 320')
    k('s_add_u32 s26, s26, s27')
    k('v_add_u32 v15, s26, v15')
    k('s_mul_i32 s24, s23, 5120')
    k('s_lshl_b32 s25, s22, 9')
    k('s_add_u32 s24, s24, s25')
    k(f's_add_u32 s25, s24, {M.WOT}')
    k(f's_add_u32 s24, s24, {M.WOF}')
    k('v_lshlrev_b32 v37, 8, v14')
    k('v_lshlrev_b32 v38, 8, v36')
    k('v_lshl_add_u32 v38, v14, 3, v38')
    fft640_zero_b1(k, 1)
    for i in range(5):
        k(f'ds_write_b128 v6, {vr(X + 4 * i, 4)} offset:{256 * i}')
    k('s_waitcnt lgkmcnt(0)')
    k('s_barrier')
    fft640_core_from_rows(k, 'v10', 'v11')
    for i in range(5):
        k(f'ds_read_b64_tr_b16 {vr(X + 4 * i, 2)}, v15 offset:{64 * i}')
        k(f'ds_read_b64_tr_b16 {vr(X + 4 * i + 2, 2)}, v15 offset:{64 * i + 4 * XP}')
    for i in range(5):
        k(f'v_add_u32 v{POS + 10 + i}, v{POS + 10 + i}, v37')
        k(f'buffer_store_dwordx4 {vr(X + 4 * i, 4)}, v{POS + 10 + i}, {WS}, s25 offen')
    fft640_stage1(k, 'v12')
    fft640_stage2(k, 'v13', True)
    for i in range(5):
        for t in range(2):
            p = PK + 4 * i + 2 * t
            k(f'v_cvt_pk_bf16_f32 v{p}, v{D2 + 8 * i + 4 * t}, v{D2 + 8 * i + 4 * t + 1}')
            k(f'v_cvt_pk_bf16_f32 v{p + 1}, v{D2 + 8 * i + 4 * t + 2}, v{D2 + 8 * i + 4 * t + 3}')
            k(f'v_add_u32 v{POS + 2 * i + t}, v{POS + 2 * i + t}, v38')
            k(f'buffer_store_dwordx2 {vr(p, 2)}, v{POS + 2 * i + t}, {WS}, s24 offen')
    endk(k, 1)
    return k
```

```python
from gen import *
import os
X = set(os.environ.get('XK3', '').split(','))

RING = 5 * 8192
K3_LDS = RING + 81920
K6_LDS = RING + 122880
LOG2E = math.log2(math.e)
LN2 = math.log(2.0)


class Stream:
    def __init__(self):
        self.l = []

    def __call__(self, t):
        self.l.append(t)


def gen_k3(is6):
    k = Kern()
    nm = 'k6' if is6 else 'k3'
    NS, PF = 5, 3
    XIN = M.XH3 if is6 else M.XH1
    PQ = M.PQ2 if is6 else M.PQ1
    KVS = M.KVS2 if is6 else M.KVS1
    ACC = 16
    BF = 160
    SQ, ID = 192, 200
    mf = 'v_mfma_f32_32x32x16_bf16'
    m4 = 'v_mfma_f32_4x4x4_16b_bf16'
    k(f'{nm}_kernel:')
    stamp_start(k, 5 if is6 else 2)
    k('s_cmp_ge_u32 s2, 256')
    k(f's_cbranch_scc1 {nm}_exit')
    srd_from_arg(k, 4, 64, M.WS_USED)
    k('v_and_b32 v1, 63, v0')
    k('v_lshrrev_b32 v2, 6, v0')
    k('v_readfirstlane_b32 s20, v2')
    k('v_and_b32 v2, 31, v0')
    k('v_bfe_u32 v3, v0, 5, 1')
    k('s_bfe_u32 s21, s2, 0x20001')
    k('s_lshl_b32 s21, s21, 2')
    k('s_lshr_b32 s22, s2, 6')
    k('s_add_u32 s21, s21, s22')
    k('s_and_b32 s22, s2, 1')
    k('s_lshl_b32 s22, s22, 3')
    k('s_bfe_u32 s23, s2, 0x30003')
    k('s_add_u32 s22, s22, s23')
    k(f's_mul_i32 s23, s21, {M.TS}')
    k('s_lshl_b32 s24, s20, 9')
    k('s_add_u32 s23, s23, s24')
    k('v_lshl_add_u32 v4, v2, 4, s23')
    k('v_lshl_add_u32 v5, v3, 11, v4')
    k('v_lshlrev_b32 v6, 4, v1')
    k(f's_mov_b32 s25, {XIN}')
    k('s_mul_i32 s26, s22, 204800')
    k('s_mul_i32 s27, s20, 5120')
    k('s_add_u32 s26, s26, s27')
    k(f's_add_u32 s26, s26, {M.WQ}')
    k('s_add_u32 s28, s26, 2048')
    k('s_lshl_b32 s27, s20, 11')
    k('s_lshl_b32 s29, s20, 10')
    k(f's_add_u32 s29, s29, {RING}')
    issued = []
    skipped = []
    ops = []
    for c in range(10):
        ops += [('B', c, 0), ('B', c, 1)] + [('A', c, i) for i in range(4)]
    for t in range(2, 5 if is6 else 4):
        ops += [('P', t, i) for i in range(10)]

    def issue(n=1):
        for _ in range(n):
            if not ops:
                return
            op = ops.pop(0)
            kind, c, i = op
            if ('novm' in X and len(issued) >= 18) or ('noA' in X and kind == 'A' and len(issued) >= 18) or ('noB' in X and kind != 'A' and len(issued) >= 18):
                skipped.append(op)
                continue
            if kind == 'B':
                if i == 0:
                    k(f's_add_u32 m0, s27, {(c % NS) * 8192}')
                k(f'buffer_load_dwordx4 v6, {WS}, s26 offen offset:{1024 * i} lds')
                if i == 1:
                    k('s_add_u32 s26, s26, 20480')
            elif kind == 'A':
                k(f'buffer_load_dwordx4 {ar(4 * (4 * c + i), 4)}, v5, {WS}, s25 offen')
                k('s_add_u32 s25, s25, 4096')
            else:
                k('s_mov_b32 m0, s29')
                k('s_add_u32 s29, s29, 4096')
                k(f'buffer_load_dwordx4 v6, {WS}, s28 offen lds')
                k(f's_add_u32 s28, s28, {20480 if i < 9 else 1024 - 9 * 20480}')
            issued.append(op)

    def wait_for(pred, extra=''):
        cand = [i for i, t in enumerate(issued) if pred(t)]
        if cand:
            k(f's_waitcnt vmcnt({len(issued) - 1 - max(cand)}){extra}')
        if 'nobar' not in X:
            k('s_barrier')

    def lds_addr(off):
        return ('v6', off) if off < 65536 else (('v7', off - 65536) if off < 131072 else ('v10', off - 131072))

    def read_frags(ks):
        base = ((ks // 4) % NS) * 8192 + (ks % 4) * 2048
        for st in range(2):
            if 'nolds' in X and ks > 1:
                continue
            k(f'ds_read_b128 {ar(BF + 8 * (ks % 2) + 4 * st, 4)}, v6 offset:{base + st * 1024}')

    def read_p2(n):
        a, o = lds_addr(RING + n * 1024)
        k(f'ds_read_b128 {ar(BF + 4 * (n % 4), 4)}, {a} offset:{o}')

    issue(6 * 2)
    stamp(k, 1)
    k('v_add_u32 v7, 0x10000, v6')
    k('v_add_u32 v10, 0x20000, v6')
    k('v_lshlrev_b32 v11, 2, v3')
    k('v_sub_u32 v11, v2, v11')
    k('v_and_b32 v12, 1, v11')
    k('v_lshlrev_b32 v12, 4, v12')
    k('v_mov_b32 v13, 0x3f80')
    k('v_lshlrev_b32 v12, v12, v13')
    k('v_or_b32 v11, 1, v11')
    for s in range(2):
        for q in range(4):
            K0 = 16 * s + 8 * (q // 2) + 2 * (q % 2)
            k(f'v_cmp_eq_u32 vcc, {K0 + 1}, v11')
            k('v_cndmask_b32 v13, 0, v12, vcc')
            k(f'v_accvgpr_write_b32 a{ID + 4 * s + q}, v13')
    k('v_cmp_eq_u32 vcc, 0, v3')
    k('v_mov_b32 v11, -1')
    k('v_mov_b32 v12, 0xffff')
    k('v_cndmask_b32 v11, v11, v12, vcc')
    k('v_cmp_gt_u32 s[30:31], 8, v2')
    k('v_cmp_gt_u32 s[32:33], 16, v2')
    k('v_cmp_eq_u32 s[34:35], 4, v2')
    k('v_cmp_eq_u32 s[36:37], 11, v2')
    k('s_or_b64 s[34:35], s[34:35], s[36:37]')
    k('v_subrev_u32 v12, 8, v2')
    k('v_cmp_gt_u32 s[36:37], 16, v12')
    k('v_mov_b32 v13, 0xff800000')
    k(f'v_mov_b32 v14, {fhex(1e-6 * LOG2E)}')
    k('v_cndmask_b32 v15, v14, v13, s[36:37]')
    k('v_cndmask_b32 v13, 0, v13, s[36:37]')
    issue(6)
    wait_for(lambda t: t[0] == 'B' and t[1] == 0)
    stamp(k, 2)
    read_frags(0)
    for ks in range(40):
        c = ks // 4
        if ks % 4 == 3:
            if c + 1 < 10:
                wait_for(lambda t: t[0] == 'B' and t[1] == c + 1)
            else:
                wait_for(lambda t: t[0] == 'P' and t[1] == 2 and t[2] <= 4)
        if ks == 20:
            stamp(k, 3)
        if ks + 1 < 40:
            read_frags(ks + 1)
        A = ar(4 * ks, 4)
        for st in range(2):
            d = vr(ACC + 16 * st, 16)
            k(f'{mf} {d}, {A}, {ar(BF + 8 * (ks % 2) + 4 * st, 4)}, {d if ks else 0}')
            if st == 0 or ks % 2 == 0 or ks >= 28:
                issue(1)
            if 'nom4' not in X:
                h = st
                r = ar(4 * ks + 2 * h, 2)
                sq = ar(SQ + 4 * h, 4)
                if ks == 0 and h == 0:
                    k('v_accvgpr_read_b32 v8, a0')
                    k('v_accvgpr_read_b32 v9, a1')
                    k('v_and_b32 v8, v8, v11')
                    r = 'v[8:9]'
                k(f'{m4} {sq}, {r}, {r}, {sq if ks else 0}')
    stamp(k, 4)
    e = Stream()
    KVB, RB = 0, 24576
    RR, R2, TM, TE, PP, MA, MB, DKV, DT, ST = 96, 112, 128, 144, 160, 184, 192, 200, 232, 128
    for i in range(8):
        e(f'v_accvgpr_read_b32 v{TM + i}, a{SQ + i}')
    for i in range(4):
        e(f'v_add_f32 v{TM + i}, v{TM + i}, v{TM + 4 + i}')
    e('v_and_b32 v9, 3, v0')
    e(f'v_mov_b32 v8, v{TM}')
    for i in range(1, 4):
        e(f'v_cmp_eq_u32 vcc, {i}, v9')
        e(f'v_cndmask_b32 v8, v8, v{TM + i}, vcc')
    e('v_mov_b32 v9, v8')
    e('v_permlane32_swap_b32 v8, v9')
    e('v_add_f32 v8, v8, v9')
    e(f'v_mov_b32 v9, {fhex(1e-5 * LN2 * LN2)}')
    e(f'v_fmamk_f32 v8, v8, {fhex(LN2 * LN2 / 640)}, v9')
    e('v_rsq_f32 v8, v8')
    e('s_mul_i32 s38, s20, 384')
    e(f's_add_u32 s38, s38, {RB}')
    e(f'v_mul_f32 v9, {fhex(LN2)}, v8')
    e('v_cmp_eq_u32 vcc, 0, v3')
    e('v_cndmask_b32 v9, v9, v8, vcc')
    e('v_lshl_add_u32 v11, v1, 2, s38')
    e('ds_write_b32 v11, v9')
    e('v_mov_b32 v9, 1.0')
    e('v_lshl_add_u32 v11, v2, 2, s38')
    e('ds_write_b32 v11, v9 offset:256')
    e('v_lshl_add_u32 v12, v3, 4, s38')
    for g in range(4):
        e(f'ds_read_b128 {vr(RR + 4 * g, 4)}, v12 offset:{32 * g}')
    e('v_subrev_u32 v9, 4, v2')
    e('v_cmp_gt_u32 vcc, 8, v9')
    e('v_add_u32 v9, 128, v12')
    e('v_cndmask_b32 v12, v12, v9, vcc')
    for g in range(4):
        e(f'ds_read_b128 {vr(R2 + 4 * g, 4)}, v12 offset:{128 + 32 * g}')
    e(f's_mov_b32 s39, {fhex(LN2)}')
    e('v_mov_b32 v11, 0x3f803f80')
    for st in range(2):
        a = ACC + 16 * st
        hi, lo = ('v13', 'v15') if st else ('0', 'v14')
        for r in range(16):
            e(f'v_mul_f32 v{TM + r}, v{a + r}, v{RR + r}')
            e(f'v_min_f32 v{TE + r}, {hi}, v{TM + r}')
            e(f'v_exp_f32 v{TE + r}, v{TE + r}')
            e(f'v_max_f32 v{TM + r}, {lo}, v{TM + r}')
            if r >= 1:
                e(f'v_fma_f32 v{TM + r - 1}, v{TM + r - 1}, s39, v{TE + r - 1}')
            if r >= 2 and r % 2 == 0:
                e(f'v_cvt_pk_bf16_f32 v{PP + 8 * st + r // 2 - 1}, v{TM + r - 2}, v{TM + r - 1}')
        e(f'v_fma_f32 v{TM + 15}, v{TM + 15}, s39, v{TE + 15}')
        e(f'v_cvt_pk_bf16_f32 v{PP + 8 * st + 7}, v{TM + 14}, v{TM + 15}')
    eB = e
    e = Stream()
    a = ACC + 32
    for q in range(8):
        e(f'v_mul_f32 v{TM + 2 * q}, v{a + 2 * q}, v{R2 + 2 * q}')
        e(f'v_mul_f32 v{TM + 2 * q + 1}, v{a + 2 * q + 1}, v{R2 + 2 * q + 1}')
        e(f'v_cvt_pk_bf16_f32 v{PP + 16 + q}, v{TM + 2 * q}, v{TM + 2 * q + 1}')
    P0, P1, P2 = PP, PP + 8, PP + 16
    for q in range(8):
        e(f'v_cndmask_b32 v{MA + q}, v{P1 + q}, v{P2 + q}, s[32:33]')
        e(f'v_cndmask_b32 v{P2 + q}, v{P2 + q}, v11, s[34:35]')
    for s in range(2):
        d = vr(DT, 16)
        e(f'{mf} {d}, {vr(MA + 4 * s, 4)}, {ar(ID + 4 * s, 4)}, {d if s else 0}')
    for q in range(8):
        e(f'v_cndmask_b32 v{MB + q}, v{P1 + q}, v{P2 + q}, s[30:31]')
        e(f'v_cndmask_b32 v{TE + q}, v{P0 + q}, v{P1 + q}, s[30:31]')
    for s in range(2):
        d = vr(DKV, 16)
        e(f'{mf} {d}, {vr(MB + 4 * s, 4)}, {vr(P0 + 4 * s, 4)}, {d if s else 0}')
    for s in range(2):
        d = vr(DKV + 16, 16)
        e(f'{mf} {d}, {vr(P2 + 4 * s, 4)}, {vr(TE + 4 * s, 4)}, {d if s else 0}')
    e('s_mul_i32 s38, s20, 6144')
    e('v_lshl_add_u32 v9, v1, 3, s38')
    e('s_mul_i32 s38, s20, 1536')
    e('v_lshl_add_u32 v12, v1, 3, s38')
    e('s_lshr_b32 s40, s20, 1')
    e('s_and_b32 s41, s20, 1')
    e('s_mul_i32 s42, s40, 12')
    e('v_add_u32 v14, s42, v2')
    e('v_and_b32 v14, 31, v14')
    e('v_cmp_gt_u32 s[50:51], 20, v14')
    e('s_lshl_b32 s42, s40, 2')
    e('v_cmp_le_u32 vcc, 16, v14')
    e('v_mov_b32 v15, s42')
    e('v_cndmask_b32 v15, 0, v15, vcc')
    e('v_add_lshl_u32 v14, v14, v15, 2')
    e('v_mul_u32_u24 v15, 384, v3')
    e('v_add_u32 v14, v14, v15')
    e('v_lshl_add_u32 v13, v3, 3, v4')
    e('s_mul_i32 s43, s22, 10240')
    e(f's_add_u32 s44, s43, {PQ + 4 * 2048}')
    e(f'v_cvt_pk_bf16_f32 v{ST}, v{DT + 12}, v{DT + 13}')
    e(f'v_cvt_pk_bf16_f32 v{ST + 1}, v{DT + 14}, v{DT + 15}')
    e(f'buffer_store_dwordx2 {vr(ST, 2)}, v13, {WS}, s44 offen')
    if is6:
        e('v_cmp_eq_u32 vcc, 0, v3')
        for x in range(2):
            e(f'v_cvt_pk_bf16_f32 v{ST + 2 + x}, v{DT + 2 * x}, v{DT + 2 * x + 1}')
            e(f'v_cvt_pk_bf16_f32 v{ST + 4 + x}, v{DT + 4 + 2 * x}, v{DT + 5 + 2 * x}')
            e(f'v_cndmask_b32 v{ST + 2 + x}, v{ST + 2 + x}, v{ST + 4 + x}, vcc')
        e(f's_add_u32 s44, s43, {M.X3 + 4 * 2048}')
        e(f'buffer_store_dwordx2 {vr(ST + 2, 2)}, v13, {WS}, s44 offen')
    for hh in range(2):
        for pr in range(6):
            e(f'ds_write_b64 v9, {vr(DKV + 16 * hh + 4 * hh + 2 * pr, 2)} offset:{KVB + 512 * (6 * hh + pr)}')
    e('v_cmp_eq_u32 s[52:53], s40, v3')
    e('s_and_b64 s[52:53], s[52:53], s[50:51]')
    e('s_cmp_eq_u32 s41, 0')
    e('s_cselect_b64 s[52:53], s[52:53], s[50:51]')
    e('s_cmp_eq_u32 s40, 0')
    e('s_cselect_b64 s[54:55], s[50:51], s[52:53]')
    e('s_cselect_b64 s[56:57], s[52:53], s[50:51]')
    row0 = lambda rho: 8 * (rho // 4) + rho % 4
    srow = [[(row0(i) if i < 4 else row0(i) - 3) for i in range(0, 6)], [row0(i) - 3 for i in range(6, 12)],
            [row0(i) - 11 + 21 for i in range(4, 10)], [row0(i) - 11 + 21 for i in range(10, 16)]]
    e('s_mul_i32 s45, s22, 4032')
    e(f's_add_u32 s45, s45, {KVS}')
    for i in range(6):
        lit = sum((srow[w][i] & 0xff) << (8 * w) for w in range(4))
        assert all(0 <= srow[w][i] < 256 for w in range(4))
        e(f's_mov_b32 s{60 + i}, {lit}')
    e('s_lshl_b32 s46, s20, 3')
    for i in range(6):
        e(f's_lshr_b32 s{60 + i}, s{60 + i}, s46')
        e(f's_and_b32 s{60 + i}, s{60 + i}, 0xff')
        e(f's_mul_i32 s{60 + i}, s{60 + i}, 96')
        e(f's_add_u32 s{60 + i}, s{60 + i}, s45')
    e('BARRIER')
    RD = TE
    for wv in range(4):
        for i in range(3):
            e(f'ds_read_b64 {vr(RD + 6 * wv + 2 * i, 2)}, v12 offset:{KVB + 6144 * wv + 512 * i}')
    for i in range(6):
        e(f'v_add_f32 v{RD + i}, v{RD + i}, v{RD + 6 + i}')
        e(f'v_add_f32 v{RD + 12 + i}, v{RD + 12 + i}, v{RD + 18 + i}')
    for i in range(6):
        e(f'v_add_f32 v{RD + i}, v{RD + i}, v{RD + 12 + i}')
    masks = ['s[54:55]', 's[52:53]', 's[52:53]', 's[56:57]', 's[50:51]', 's[50:51]']
    at = []
    for i in range(6):
        at.append(f's_mov_b64 exec, {masks[i]}')
        at.append(f'buffer_atomic_add_f32 v{RD + i}, v14, {WS}, s{60 + i} offen')
    at.append('s_mov_b64 exec, -1')
    e('\n'.join(at))
    e2 = Stream()
    a = ACC + 48
    e2(f'v_mov_b32 v14, {fhex(1e-6 * LOG2E)}')
    e2(f's_add_u32 s44, s43, {PQ}')
    for r in range(16):
        e2(f'v_mul_f32 v{TM + r}, v{a + r}, v8')
        e2(f'v_min_f32 v{PP + r}, 0, v{TM + r}')
        e2(f'v_exp_f32 v{PP + r}, v{PP + r}')
        e2(f'v_max_f32 v{TM + r}, v14, v{TM + r}')
        if r >= 1:
            e2(f'v_fma_f32 v{TM + r - 1}, v{TM + r - 1}, s39, v{PP + r - 1}')
        if r >= 2 and r % 2 == 0:
            e2(f'v_cvt_pk_bf16_f32 v{MA + r // 2 - 1}, v{TM + r - 2}, v{TM + r - 1}')
        if r == 8:
            e2(f'buffer_store_dwordx4 {vr(MA, 4)}, v5, {WS}, s44 offen')
            e2('s_add_u32 s44, s44, 4096')
    e2(f'v_fma_f32 v{TM + 15}, v{TM + 15}, s39, v{PP + 15}')
    e2(f'v_cvt_pk_bf16_f32 v{MA + 7}, v{TM + 14}, v{TM + 15}')
    e2(f'buffer_store_dwordx4 {vr(MA + 4, 4)}, v5, {WS}, s44 offen')

    def drain(st, n):
        while n > 0 and st.l:
            t = st.l.pop(0)
            if t == 'BARRIER':
                k('s_waitcnt lgkmcnt(0)')
                k('s_barrier')
            else:
                k(t)
                for x in t.split('\n'):
                    if x.startswith('buffer_'):
                        issued.append(('S', 0, 0))
            n -= 1

    NP = 120 if is6 else 80
    perB = (len(eB.l) + 39) // 40
    perC = (len(e.l) + 35) // 36
    for n in range(3):
        read_p2(n)
    for n in range(NP):
        t, ks = 2 + n // 40, n % 40
        if n + 3 < NP:
            nn = n + 3
            if nn == 20:
                wait_for(lambda x: x[0] == 'P' and x[1] == 2)
            if nn == 40:
                wait_for(lambda x: x[0] == 'P' and x[1] == 3)
            if nn == 80:
                wait_for(lambda x: x[0] == 'P' and x[1] == 4)
            read_p2(nn)
        d = vr(ACC + 16 * t, 16)
        B, A = ar(BF + 4 * (n % 4), 4), ar(4 * ks, 4)
        x, y = (A, B) if t == 2 else (B, A)
        k(f'{mf} {d}, {x}, {y}, {d if ks else 0}')
        if n < 12:
            issue(1)
        if 'noe' in X:
            continue
        if n == 40:
            stamp(k, 5)
        if n < 40:
            drain(eB, perB)
        elif 42 <= n < 80:
            drain(e, perC)
        elif n >= 82:
            drain(e2, 3)
    assert not ops
    drain(eB, 10000)
    drain(e, 10000)
    if is6:
        k(f's_add_u32 s47, s43, {M.X3}')
        for gq in range(2):
            for x in range(4):
                k(f'v_cvt_pk_bf16_f32 v{DT + 4 * gq + x}, v{ACC + 64 + 8 * gq + 2 * x}, v{ACC + 64 + 8 * gq + 2 * x + 1}')
            k(f'buffer_store_dwordx4 {vr(DT + 4 * gq, 4)}, v5, {WS}, s47 offen')
            k('s_add_u32 s47, s47, 4096')
    drain(e2, 10000)
    stamp(k, 6)
    endk(k, 2)
    k(f'{nm}_exit:')
    k('s_endpgm')
    return k
```

```python
from gen import *
import os
X = set(os.environ.get('XK4', '').split(','))

KVI = 102400 + 2048
RED = KVI
K4_LDS = KVI + 32768
K4_BLOCK = 512


def gen_k4():
    k = Kern()
    mf = 'v_mfma_f32_16x16x32_bf16'
    for nm, kidx in (('k4', 3), ('k7', 6)):
        k(f'{nm}_kernel:')
        stamp_start(k, kidx)
        k('s_cmp_ge_u32 s2, 256')
        k('s_cbranch_scc1 k4_exit')
        srd_from_arg(k, 4, 64, M.WS_USED)
        if nm == 'k4':
            srd_from_arg(k, 8, 64, M.WS_USED)
            k(f's_mov_b32 s40, {M.PQ1}')
            k(f's_mov_b32 s41, {M.KVS1}')
            k(f's_mov_b32 s42, {M.WOF}')
            k(f's_mov_b32 s43, {M.XH1}')
            k(f's_mov_b32 s44, {M.XH2}')
            k('s_mov_b32 s45, 2048')
            k('s_mov_b32 s46, 16')
            k(f's_mov_b32 s47, {M.TS}')
            k('s_branch k4_main')
        else:
            srd_from_arg(k, 8, 48, 2048 * 1280)
            k(f's_mov_b32 s40, {M.PQ2}')
            k(f's_mov_b32 s41, {M.KVS2}')
            k(f's_mov_b32 s42, {M.WOT}')
            k(f's_mov_b32 s43, {M.X3}')
            k('s_mov_b32 s44, 0')
            k('s_mov_b32 s45, 16')
            k('s_mov_b32 s46, 1280')
            k(f's_mov_b32 s47, {128 * 1280}')
    k('k4_main:')
    k('v_lshlrev_b32 v5, 4, v0')
    k('v_and_b32 v1, 63, v0')
    k('v_lshrrev_b32 v2, 6, v0')
    k('v_readfirstlane_b32 s19, v2')
    k('v_and_b32 v2, 15, v0')
    k('v_bfe_u32 v3, v0, 4, 2')
    k('s_and_b32 s20, s19, 3')
    k('s_lshr_b32 s19, s19, 2')
    k('s_bfe_u32 s21, s2, 0x20001')
    k('s_lshl_b32 s21, s21, 2')
    k('s_lshr_b32 s22, s2, 6')
    k('s_add_u32 s21, s21, s22')
    k('s_bfe_u32 s24, s2, 0x10005')
    k('s_and_b32 s22, s2, 1')
    k('s_lshl_b32 s22, s22, 2')
    k('s_bfe_u32 s23, s2, 0x20003')
    k('s_add_u32 s22, s22, s23')
    k('s_lshl_b32 s24, s24, 6')
    k('s_lshl_b32 s23, s20, 4')
    k('s_add_u32 s24, s24, s23')
    k('v_add_u32 v4, s24, v2')
    k(f's_mul_i32 s23, s21, {M.TS}')
    k('s_add_u32 s40, s40, s23')
    k(f's_mul_i32 s26, s19, {40 * 2048}')
    k('s_add_u32 s40, s40, s26')
    k('v_lshlrev_b32 v6, 4, v1')
    k('v_lshlrev_b32 v7, 11, v3')
    k('v_lshl_add_u32 v8, v4, 4, v7')
    k('v_add_u32 v10, 4096, v8')
    k('v_cmp_eq_u32 vcc, 2, v3')
    k('v_cndmask_b32 v9, v8, v10, vcc')
    k('v_cmp_eq_u32 vcc, 3, v3')
    k('v_mov_b32 v11, 0x40000000')
    k('v_cndmask_b32 v9, v9, v11, vcc')
    k('v_cndmask_b32 v10, v10, v11, vcc')
    k('s_mul_i32 s25, s22, 102400')
    k('s_add_u32 s25, s25, s42')
    k('s_mul_i32 s26, s19, 51200')
    k('s_lshl_b32 s27, s20, 10')
    k('s_add_u32 s27, s27, s26')
    k('s_add_u32 s25, s25, s27')
    KS, DD, PO, ACC, RS, RF = 24, 24, 72, 112, 132, 140
    KF, WF = 32, 56
    issued = []
    order = 'p p d d d p p d d p p d d p d p p d d p p d d d p r r p p p p'.split()
    cnt = {'p': 0, 'd': 0, 'r': 0}
    ops = [('kv', i) for i in range(8)]
    for o in order:
        ops.append(({'p': 'pq', 'd': 'dma', 'r': 'res'}[o], cnt[o]))
        cnt[o] += 1
    assert cnt == {'p': 16, 'd': 13, 'r': 2}, cnt
    state = {'mf': -1}

    def issue(n=1):
        for _ in range(n):
            if not ops:
                return
            if ops[0][0] == 'pq' and ops[0][1] - 8 > state['mf']:
                return
            op = ops.pop(0)
            kind, i = op
            if kind == 'kv':
                k(f'buffer_load_dwordx4 {vr(KS + 4 * i, 4)}, v5, {WS}, s41 offen')
                k('s_add_u32 s41, s41, 8192')
            elif kind == 'pq':
                k(f'buffer_load_dwordx4 {ar(4 * (i % 8), 4)}, {"v9" if i % 2 == 0 else "v10"}, {WS}, s40 offen')
                if i % 2:
                    k(f's_add_u32 s40, s40, {5 * 2048}')
            elif kind == 'dma':
                k('s_mov_b32 m0, s27')
                k('s_add_u32 s27, s27, 4096')
                k(f'buffer_load_dwordx4 v6, {WS}, s25 offen lds')
                k('s_add_u32 s25, s25, 4096')
            elif kind == 'res':
                if i == 0:
                    k(f'buffer_load_dwordx4 {vr(RS, 4)}, v8, {WS}, s35 offen')
                else:
                    k(f'buffer_load_dwordx2 {vr(RS + 4, 2)}, v15, {WS}, s43 offen')
            issued.append(op)

    issue(8 + 4)
    stamp(k, 1)
    k('v_lshlrev_b32 v11, 3, v0')
    k(f'v_add_u32 v11, {KVI}, v11')
    k('v_lshrrev_b32 v12, 2, v2')
    k('v_mul_u32_u24 v12, 5, v12')
    k('v_and_b32 v13, 3, v2')
    k('v_add3_u32 v14, v12, v13, 1')
    k('v_cmp_gt_u32 vcc, 4, v2')
    k('v_cndmask_b32 v16, v14, v13, vcc')
    k('v_add_u32 v12, 5, v12')
    k('v_cmp_eq_u32 vcc, 0, v13')
    k('v_cndmask_b32 v17, 4, v12, vcc')
    k('v_cndmask_b32 v12, 0, v12, vcc')
    k('v_min_u32 v13, 2, v3')
    k(f's_mul_i32 s28, s19, {16 * 1008}')
    k(f's_add_u32 s28, s28, {KVI}')
    k('v_lshl_add_u32 v13, v13, 4, s28')
    k('v_mad_u32_u24 v12, v12, 48, v13')
    k('v_mad_u32_u24 v16, v16, 48, v13')
    k('v_mad_u32_u24 v17, v17, 48, v13')
    k('v_mad_u32_u24 v13, v14, 48, v13')
    k('v_add_u32 v21, s26, v6')
    k('s_lshl_b32 s28, s19, 11')
    k('v_add_u32 v14, s28, v21')
    k('v_subrev_u32 v22, s28, v21')
    k('v_lshrrev_b32 v18, 1, v3')
    k('v_lshlrev_b32 v15, 11, v18')
    k('v_and_b32 v7, 1, v3')
    k('v_lshl_add_u32 v15, v7, 3, v15')
    k('v_lshl_add_u32 v15, v4, 4, v15')
    k('s_mul_i32 s28, s22, 20480')
    k('s_add_u32 s43, s43, s28')
    k('s_add_u32 s43, s43, s23')
    k('s_lshl_b32 s28, s19, 13')
    k('s_add_u32 s35, s43, s28')
    k('s_add_u32 s43, s43, 16384')
    k(f's_mov_b32 s29, {fhex(1e-6)}')
    k('v_mul_lo_u32 v19, v3, s45')
    k('v_mul_lo_u32 v20, v4, s46')
    k('v_add_u32 v19, v19, v20')
    k('v_mul_lo_u32 v18, v18, s45')
    k('v_lshl_add_u32 v18, v7, 3, v18')
    k('v_add_u32 v20, v18, v20')
    k('s_mul_i32 s30, s22, 10')
    k('s_mul_i32 s30, s30, s45')
    k('s_add_u32 s30, s30, s44')
    k('s_mul_i32 s31, s21, s47')
    k('s_add_u32 s30, s30, s31')
    k('s_lshl_b32 s31, s45, 3')
    k('s_add_u32 s33, s30, s31')
    k('s_lshl_b32 s31, s45, 2')
    k('s_mul_i32 s31, s31, s19')
    k('s_add_u32 s30, s30, s31')
    k('s_lshl_b32 s28, s19, 2')
    k('s_add_u32 s28, s28, s20')
    k('s_mul_i32 s34, s28, 3072')
    k(f's_add_u32 s34, s34, {RED}')
    k('v_add_u32 v18, s34, v6')
    k('s_xor_b32 s28, s28, 4')
    k('s_mul_i32 s34, s28, 3072')
    k(f's_add_u32 s34, s34, {RED}')
    k('v_add_u32 v23, s34, v6')
    for i in range(8):
        b = KS + 4 * i
        k(f'v_cvt_pk_bf16_f32 v{b}, v{b}, v{b + 1}')
        k(f'v_cvt_pk_bf16_f32 v{b + 1}, v{b + 2}, v{b + 3}')
        k(f'ds_write_b64 v11, {vr(b, 2)} offset:{4096 * i}')
        issue(1)
    k('s_waitcnt lgkmcnt(0)')
    k('s_barrier')
    stamp(k, 2)

    def rd_kv(h):
        k(f'ds_read_b128 {ar(KF + 8 * (h % 3), 4)}, {"v13" if h % 2 else "v16"} offset:{1008 * h}')
        k(f'ds_read_b128 {ar(KF + 8 * (h % 3) + 4, 4)}, {"v12" if h % 2 else "v17"} offset:{1008 * h}')

    def rd_wo(n):
        ks, t = divmod(n, 5)
        base = 'v14' if t < 2 else ('v22' if t < 4 else 'v21')
        k(f'ds_read_b128 {ar(WF + 4 * (n % 10), 4)}, {base} offset:{ks * 5120 + t * 1024}')

    dreg = lambda h: DD + 8 * (h % 6)

    def fin(h):
        d = dreg(h)
        k(f'v_add_f32 v{d + 6}, s29, v{d + 5}')
        k(f'v_rcp_f32 v{d + 6}, v{d + 6}')

    def fin2(h):
        d = dreg(h)
        for x in range(5):
            k(f'v_mul_f32 v{d + x}, v{d + x}, v{d + 6}')
        p = PO + 5 * (h // 2)
        if h % 2 == 0:
            k(f'v_cvt_pk_bf16_f32 v{p}, v{d}, v{d + 1}')
            k(f'v_cvt_pk_bf16_f32 v{p + 1}, v{d + 2}, v{d + 3}')
        else:
            k(f'v_cvt_pk_bf16_f32 v{p + 2}, v{dreg(h - 1) + 4}, v{d}')
            k(f'v_cvt_pk_bf16_f32 v{p + 3}, v{d + 1}, v{d + 2}')
            k(f'v_cvt_pk_bf16_f32 v{p + 4}, v{d + 3}, v{d + 4}')

    def wait_dma(n):
        last = max(i for i, t in enumerate(issued) if t[0] == 'dma' and t[1] < n)
        assert ('dma', n - 1) in issued
        k(f's_waitcnt vmcnt({len(issued) - 1 - last})')
        k('s_barrier')

    need_head = [2 * ((4 * ks + 3) // 5) + (1 if (4 * ks + 3) % 5 >= 2 else 0) for ks in range(10)]
    chk = {0: 3, 2: 5, 4: 8, 6: 10, 8: 13}
    st = {'rd': 0, 'mm': 0}

    def rd_kstep():
        ks = st['rd']
        if ks in chk:
            wait_dma(chk[ks])
        for t in range(5):
            rd_wo(5 * ks + t)
        st['rd'] += 1

    def main_kstep():
        ks = st['mm']
        nxt = st['rd'] if st['rd'] < 10 and st['rd'] == ks + 1 else None
        if nxt is not None and nxt in chk:
            wait_dma(chk[nxt])
        for t in range(5):
            if nxt is not None:
                rd_wo(5 * nxt + t)
            d = vr(ACC + 4 * t, 4)
            k(f'{mf} {d}, {ar(WF + 4 * ((5 * ks + t) % 10), 4)}, {vr(PO + 4 * ks, 4)}, {d if ks else 0}')
            if t == 2:
                issue(1)
        if nxt is not None:
            st['rd'] += 1
        st['mm'] += 1

    for h in range(2):
        rd_kv(h)
    for h in range(19):
        if h < 16:
            if h + 2 < 16:
                rd_kv(h + 2)
            for t in range(2):
                k(f'{mf} {vr(dreg(h) + 4 * t, 4)}, {ar(KF + 8 * (h % 3) + 4 * t, 4)}, {ar(4 * (h % 8), 4)}, 0')
            state['mf'] = h
            issue(1)
        if 2 <= h < 18:
            fin(h - 2)
        if h == 3:
            rd_kstep()
        if h >= 3:
            fin2(h - 3)
            while st['mm'] < 10 and need_head[st['mm']] <= h - 4 + (1 if h == 18 else 0):
                main_kstep()
        if h == 8:
            stamp(k, 3)
        if h == 15:
            stamp(k, 4)
            for x in range(6):
                k(f'v_lshlrev_b32 v{RF + 2 * x}, 16, v{RS + x}')
                k(f'v_and_b32 v{RF + 2 * x + 1}, 0xffff0000, v{RS + x}')
    assert not ops and st['mm'] == 10, (ops, st)
    stamp(k, 5)
    for t in range(3):
        k(f'ds_write_b128 v18, {vr(ACC + 8 + 4 * t, 4)} offset:{1024 * t}')
    for x in range(8):
        k(f'v_add_f32 v{ACC + x}, v{ACC + x}, v{RF + x}')
    for x in range(4):
        k(f'v_add_f32 v{ACC + 8 + x}, v{ACC + 16 + x}, v{RF + 8 + x}')
    k('s_waitcnt lgkmcnt(0)')
    k('s_barrier')
    for t in range(3):
        k(f'ds_read_b128 {vr(RF + 4 * t, 4)}, v23 offset:{1024 * t}')
    for x in range(6):
        k(f'v_pk_add_f32 {vr(ACC + 2 * x, 2)}, {vr(ACC + 2 * x, 2)}, {vr(RF + 2 * x, 2)}')
        k(f'v_cvt_pk_bf16_f32 v{PO + x}, v{ACC + 2 * x}, v{ACC + 2 * x + 1}')
        if x == 3:
            k(f'buffer_store_dwordx4 {vr(PO, 4)}, v19, {AUX}, s30 offen')
    k('s_cmp_eq_u32 s19, 0')
    k('s_cbranch_scc1 k4_st3')
    for x in range(4):
        k(f'v_mov_b32 v{ACC + 8 + x}, 0')
    k('s_branch k4_ssq')
    k('k4_st3:')
    k(f'buffer_store_dwordx2 {vr(PO + 4, 2)}, v20, {AUX}, s33 offen')
    k('k4_ssq: ; nojoinwait')
    k('s_cmp_eq_u32 s46, 16')
    k('s_cbranch_scc0 k4_done')
    k('s_add_u32 s34, s22, s19')
    k('s_cmp_eq_u32 s34, 0')
    k('s_cselect_b32 s34, 16, 0')
    k('v_cmp_gt_u32 vcc, s34, v1')
    k('v_mov_b32 v12, 0')
    k(f'v_cndmask_b32 v{ACC + 1}, v{ACC + 1}, v12, vcc')
    k(f'v_pk_mul_f32 v[12:13], {vr(ACC, 2)}, {vr(ACC, 2)}')
    k(f'v_pk_mul_f32 v[14:15], {vr(ACC + 2, 2)}, {vr(ACC + 2, 2)}')
    for x in range(2, 6):
        t = 'v[12:13]' if x % 2 == 0 else 'v[14:15]'
        k(f'v_pk_fma_f32 {t}, {vr(ACC + 2 * x, 2)}, {vr(ACC + 2 * x, 2)}, {t}')
    k('v_pk_add_f32 v[12:13], v[12:13], v[14:15]')
    k('v_add_f32 v12, v12, v13')
    k('v_mov_b32 v13, v12')
    k('v_permlane16_swap_b32 v12, v13')
    k('v_add_f32 v12, v12, v13')
    k('v_mov_b32 v13, v12')
    k('v_permlane32_swap_b32 v12, v13')
    k('v_add_f32 v12, v12, v13')
    k('v_lshlrev_b32 v13, 2, v4')
    k('s_lshl_b32 s34, s21, 9')
    k(f's_add_u32 s34, s34, {M.SSQ2}')
    k('s_mov_b64 exec, 0xffff')
    k(f'buffer_atomic_add_f32 v12, v13, {WS}, s34 offen')
    k('s_mov_b64 exec, -1')
    endk(k, 3)
    k('k4_done:')
    endk(k, 3)
    k('k4_exit:')
    k('s_endpgm')
    return k
```

```python
import numpy as np
S, D, H, Dh = 2048, 640, 32, 20
def bf2f(u): return (np.asarray(u).astype(np.uint32) << 16).view(np.float32)
def f2bf(x):
    x = np.ascontiguousarray(x, dtype=np.float32); u = x.view(np.uint32)
    return ((u + 0x7FFF + ((u >> 16) & 1)) >> 16).astype(np.uint16)
def rb(x): return bf2f(f2bf(x))

TS = 80 * 2048 + 2048
XH_BYTES = 16 * TS
WT_BYTES = 320 * 8192
off = 0
def _alloc(n):
    global off
    o = off; off += (n + 4095) // 4096 * 4096; return o
XH0 = _alloc(XH_BYTES); XH1 = _alloc(XH_BYTES); XH2 = _alloc(XH_BYTES); XH3 = _alloc(XH_BYTES)
X3 = _alloc(XH_BYTES); PQ1 = _alloc(XH_BYTES); PQ2 = _alloc(XH_BYTES)
WT = _alloc(WT_BYTES)
WQ = _alloc(16 * 40 * 5 * 1024)
WOF = _alloc(8 * 100 * 1024); WOT = _alloc(8 * 100 * 1024)
SSQ0 = _alloc(8192)
ZERO_START = off
SSQ2 = _alloc(8192)
KVS_BYTES = 32 * 21 * 96
KVS1 = _alloc(KVS_BYTES + 1024); KVS2 = _alloc(KVS_BYTES + 1024)
ZERO_END = off
STAMP = _alloc(8 * 262144)
WS_USED = off

def freq(cs):
    b, m = divmod(cs, 16)
    if b >= 1: return b + 40 * m if m < 8 else 40 - b + 40 * (m - 8)
    if m == 0: return 320
    return 40 * m if m < 8 else 20 + 40 * (m - 8)
FREQ = np.array([freq(c) for c in range(320)])
assert sorted(FREQ) == list(range(1, 321))
def Fmat():
    d = np.arange(D)[:, None]; F = np.zeros((D, D))
    c = FREQ[None, :]
    F[:, 0::2] = np.sqrt(2 / D) * np.cos(2 * np.pi * d * c / D)
    F[:, 1::2] = -np.sqrt(2 / D) * np.sin(2 * np.pi * d * c / D)
    F[:, 0] = ((-1.0) ** np.arange(D)) / np.sqrt(D)
    F[:, 1] = 1 / np.sqrt(D)
    return F
def T1mat():
    n1 = np.arange(40); T1 = np.zeros((20, 2, 40)); s1 = 1 / np.sqrt(40)
    T1[0, 0] = s1; T1[0, 1] = s1 * (-1.0) ** n1
    for b in range(1, 20):
        T1[b, 0] = np.sqrt(2) * s1 * np.cos(2 * np.pi * b * n1 / 40); T1[b, 1] = -np.sqrt(2) * s1 * np.sin(2 * np.pi * b * n1 / 40)
    return T1
def T2mat():
    T1 = T1mat(); M1 = np.zeros((D, 20, 2, 16))
    for n2 in range(16): M1[n2::16, :, :, n2] = T1.transpose(2, 0, 1)
    T2 = M1.reshape(D, D).T @ Fmat()
    T2[np.abs(T2) < 1e-9] = 0
    T2 = T2.reshape(20, 2, 16, 20, 32)
    for b in range(20):
        for b2 in range(20):
            if b != b2: assert np.all(T2[b, :, :, b2] == 0), (b, b2)
    return np.stack([T2[b, :, :, b] for b in range(20)])
def n1_of(g, i): return 16 * (i // 4) + 4 * g + i % 4 if i < 8 else 32 + 2 * g + (i - 8)
def T1table():
    T1 = T1mat(); tab = np.zeros((3, 2, 64, 8), np.float32)
    for t in range(3):
        for l in range(64):
            i, g = l % 16, l // 16
            sig = 4 * t + i % 4; gp = i // 4
            if sig >= 10: continue
            b, ri = 5 * gp + sig // 2, sig % 2
            for e in range(8): tab[t, 0, l, e] = T1[b, ri, n1_of(g, e)]
            for e in range(2): tab[t, 1, l, e] = T1[b, ri, n1_of(g, 8 + e)]
    return f2bf(tab)
def T2table():
    T2 = T2mat(); tab = np.zeros((20, 2, 64, 8), np.float32)
    for b in range(20):
        for t in range(2):
            for l in range(64):
                i, g = l % 16, l // 16
                kl = 8 * (i // 4) + 4 * t + i % 4
                for ri in range(2):
                    for q in range(4): tab[b, t, l, 4 * ri + q] = T2[b, ri, 4 * g + q, kl]
    return f2bf(tab)
def fft640(x):
    V = x.shape[0]
    xm = x.reshape(V, 40, 16).astype(np.float32)
    U = rb(np.einsum('brn,vnm->vbrm', rb(T1mat()), xm))
    return np.einsum('vbrm,brmk->vbk', U, rb(T2mat())).reshape(V, D).astype(np.float32)

def from_gran(u):
    t = u.reshape(16, TS // 2)[:, :80 * 1024].reshape(16, 80, 128, 8)
    return bf2f(t.transpose(0, 2, 1, 3).reshape(2048, 640))

def wq_col(nt, st, cl):
    h0, h1 = 2 * nt, 2 * nt + 1
    Q, K, V = 0, 640, 1280
    if st >= 3:
        hf = (cl // 4) % 2; rho = 4 * (cl // 8) + cl % 4
        gi = 2 * (rho // 8) + hf
        if st == 4: return ('i', 40 * nt + 8 * gi + rho % 8)
        return ('w', Q + 20 * (h0 + gi // 2) + 8 * hf + rho % 8)
    if st == 0:
        return ('w', K + 20 * h0 + cl) if cl < 20 else ('w', K + 20 * h1 + cl - 20)
    if st == 1:
        if cl < 8: return ('w', K + 20 * h1 + 12 + cl)
        if cl < 24: return ('w', V + 20 * h0 + 4 + cl - 8)
        if cl < 28: return ('w', Q + 20 * h0 + 16 + cl - 24)
        return ('w', Q + 20 * h1 + 16 + cl - 28)
    if cl < 4: return ('w', V + 20 * h0 + cl)
    if cl < 12: return ('i', 40 * nt + 32 + (cl - 8 if cl >= 8 else cl))
    return ('w', V + 20 * h1 + cl - 12)
WQ_POS_W = np.zeros(1920, np.int64); WQ_POS_I = np.zeros(640, np.int64)
for nt in range(16):
    for st in range(5):
        for cl in range(32):
            k, n = wq_col(nt, st, cl)
            (WQ_POS_W if k == 'w' else WQ_POS_I)[n] = nt * 204800 + st * 1024 + cl * 16
def wq_joff(j): return (j // 2) * 5120 + (j % 2) * 512
def build_WQ(Wp, Fi):
    img = np.zeros(16 * 40 * 5 * 512, np.uint16)
    for src, pos in ((Wp, WQ_POS_W), (Fi, WQ_POS_I)):
        u = f2bf(src).reshape(-1, 80, 8)
        for j in range(80):
            idx = (pos + wq_joff(j)) // 2
            img[idx[:, None] + np.arange(8)[None, :]] = u[:, j]
    return img
def o_c(ks, g, e8):
    oc, f = divmod(ks, 5); u = 8 * f + e8
    return 20 * (8 * oc + u // 5) + 5 * g + u % 5
def out_col(nt, t5, i):
    gd, r = divmod(i, 4)
    if t5 < 4: return 80 * nt + 32 * (t5 // 2) + 8 * gd + 4 * (t5 % 2) + r
    return 80 * nt + 64 + 4 * gd + r
OC = np.array([[[o_c(ks, g, e) for e in range(8)] for g in range(4)] for ks in range(20)])
assert sorted(OC.ravel()) == list(range(640))
OUTCOL = np.array([[[out_col(nt, t, i) for i in range(16)] for t in range(5)] for nt in range(8)])
def build_WO(M):
    u = f2bf(M); img = np.zeros((8, 20, 5, 4, 16, 8), np.uint16)
    for nt in range(8):
        for t in range(5):
            img[nt, :, t] = u[OC[:, :, None, :], OUTCOL[nt, t][None, None, :, None]]
    return img.ravel()
WO_POS = np.zeros(640, np.int64)
for nt in range(8):
    for t in range(5):
        for i in range(16): WO_POS[OUTCOL[nt, t, i]] = nt * 102400 + t * 1024 + i * 16
def build_WT(wr, wi):
    img = np.zeros((320, 8, 64, 4, 2), np.uint16)
    for a, ri in ((wr, 0), (wi, 1)):
        m = a[:, FREQ].reshape(8, 4, 64, 320)
        img[..., ri] = m.transpose(3, 0, 2, 1)
    return img.ravel()

def colpass(xh, ssq, wr, wi):
    r = (1 / np.sqrt(ssq / D + 1e-5) / 2048).astype(np.float32)
    u = rb(xh * r[:, None])
    uc = u[:, 0::2] + 1j * u[:, 1::2]; uc[:, 0] = uc[:, 0].real
    Wc = (wr + 1j * wi)[:, FREQ]
    rc = lambda z: rb(z.real) + 1j * rb(z.imag)
    N1, N2 = 64, 32
    n1 = np.arange(N1); n2 = np.arange(N2)
    F1 = rc(np.exp(-2j * np.pi * np.outer(n1, n1) / N1)); F2 = rc(np.exp(-2j * np.pi * np.outer(n2, n2) / N2))
    tw = np.exp(-2j * np.pi * np.outer(n2, n1) / S)
    a = uc.reshape(N1, N2, 320)
    d1 = rc(np.einsum('abc,ak->bkc', a, F1) * tw[:, :, None])
    d2 = rc(np.einsum('bkc,bj->jkc', d1, F2) * Wc.reshape(N2, N1, 320))
    d3 = rc(np.einsum('jkc,jm->mkc', d2, F2.conj()) * tw.conj()[:, :, None])
    y = np.einsum('mkc,ka->amc', d3, F1.conj()).reshape(S, 320)
    out = xh.copy()
    out[:, 0::2] += y.real.astype(np.float32); out[:, 3::2] += y.imag[:, 1:].astype(np.float32)
    return rb(out)
def ssq_of(xh):
    t = xh.astype(np.float64) ** 2
    return t.sum(1) - t[:, 1]
PQ_ORDER = np.array([[40 * t + d for d in list(range(0, 16)) + list(range(20, 36)) + [16, 17, 18, 19, 36, 37, 38, 39]] for t in range(16)]).ravel()
def qkv_phase(xh, Wp):
    r = (1 / np.sqrt(ssq_of(xh) / D + 1e-5)).astype(np.float32)
    qkv = (xh @ Wp.T) * r[:, None]
    q, k, v = qkv[:, :640], qkv[:, 640:1280], qkv[:, 1280:]
    phi = lambda t: np.where(t > 0, t + 1, np.exp(np.minimum(t, 0))) + 1e-6
    pq, pk, v = rb(phi(q)), rb(phi(k)).reshape(S, H, Dh), rb(v).reshape(S, H, Dh)
    kv = np.einsum('shd,she->hed', pk, v); z = pk.sum(0)
    kvs = np.zeros((32, 21, 24), np.float32)
    full = np.concatenate([z[:, None, :], kv], 1)
    st = full.copy()
    st[0::2] = full[0::2][:, [1, 2, 3, 4, 0] + list(range(5, 21))]
    kvs[:, :, :16] = st[:, :, :16]
    kvs[0::2, :, 16:20] = st[0::2, :, 16:]; kvs[1::2, :, 20:24] = st[1::2, :, 16:]
    return pq, kvs, full
def o_phase(pq, full):
    f = rb(full); p = pq.reshape(S, H, Dh)
    num = np.einsum('shd,hed->she', p, f[:, 1:]); den = np.einsum('shd,hd->sh', p, f[:, 0]) + 1e-6
    return rb(num / den[:, :, None]).reshape(S, D)
def expected(d):
    x0 = bf2f(d['A_x'])[0]; wr = bf2f(d['A_w_r']); wi = bf2f(d['A_w_i']); wqkv = bf2f(d['B_wqkv']); wo = bf2f(d['B_wo'])
    E = {}
    xh0 = rb(fft640(x0)); E['XH0'] = xh0
    x64 = x0.astype(np.float64); E['SSQ0'] = ((x64 ** 2).sum(1) - x64.sum(1) ** 2 / D)
    Wp = rb(fft640(wqkv.T.copy())); Wp[:, 1] = 0; E['Wp'] = Wp
    Fi = rb(fft640(np.eye(D, dtype=np.float32))); E['Fi'] = Fi
    wop = rb(fft640(wo)); E['wop'] = wop
    E['WQ'] = build_WQ(Wp, Fi); E['WOF'] = build_WO(wop); E['WOT'] = build_WO(wo); E['WT'] = build_WT(d['A_w_r'], d['A_w_i'])
    xh1 = colpass(xh0, E['SSQ0'], wr, wi); E['XH1'] = xh1
    pq, kvs, full = qkv_phase(xh1, Wp); E['PQ1'] = pq; E['KVS1'] = kvs
    o1 = o_phase(pq, full)
    xh2f = xh1 + o1 @ wop; xh2 = rb(xh2f); E['XH2'] = xh2; E['SSQ2'] = ssq_of(xh2f)
    xh3 = colpass(xh2, E['SSQ2'], wr, wi); E['XH3'] = xh3
    x3 = rb(xh3 @ Fi.T); E['X3'] = x3
    pq, kvs, full = qkv_phase(xh3, Wp); E['PQ2'] = pq; E['KVS2'] = kvs
    o2 = o_phase(pq, full)
    E['out'] = rb(x3 + o2 @ wo)
    return E
if __name__ == '__main__':
    d = np.load('ref0.npz'); E = expected(d)
    ref = bf2f(d['out'])[0]; ex = d['exact'][0]
    rel = lambda a, b: np.linalg.norm(a - b) / np.linalg.norm(b)
    print('vs exact', rel(E['out'], ex), 'vs ref', rel(E['out'], ref), 'WS_USED', WS_USED)
    print(T1table().shape, T2table().shape)
```

```python
import re
import struct

REG_RE = re.compile(r'^(-|abs\(|\|)?([vas])(\d+|\[(\d+):(\d+)\])\)?\|?$')


def parse_regs(op):
    op = op.strip()
    if op in ('vcc', 'exec', 'm0', 'scc'):
        return [(op, 0)]
    if op in ('vcc_lo', 'vcc_hi'):
        return [('vcc', 0)]
    if op in ('exec_lo', 'exec_hi'):
        return [('exec', 0)]
    m = REG_RE.match(op)
    if not m:
        return []
    k = m.group(2)
    if m.group(4) is not None:
        return [(k, i) for i in range(int(m.group(4)), int(m.group(5)) + 1)]
    return [(k, int(m.group(3)))]


def split_ops(s):
    out, depth, cur = [], 0, ''
    for ch in s:
        if ch in '[(':
            depth += 1
        elif ch in '])':
            depth -= 1
        if ch == ',' and depth == 0:
            out.append(cur.strip())
            cur = ''
        else:
            cur += ch
    if cur.strip():
        out.append(cur.strip())
    return out


TRANS = ('v_exp_f32', 'v_log_f32', 'v_rcp_f32', 'v_rsq_f32', 'v_sqrt_f32', 'v_sin_f32', 'v_cos_f32')


class Inst:
    def __init__(self, text):
        self.text = text
        t = text.split(';')[0].strip()
        self.label = t.endswith(':')
        parts = t.split(None, 1)
        self.op = parts[0] if parts else ''
        rest = parts[1] if len(parts) > 1 else ''
        ops = split_ops(rest)
        mods = ''
        if ops:
            toks = ops[-1].split(None, 1)
            ops[-1] = toks[0]
            mods = toks[1] if len(toks) > 1 else ''
        self.ops, self.mods = ops, mods
        op = self.op
        self.dst, self.src = [], []
        self.kind = 'other'
        R = [parse_regs(o) for o in ops]
        flat = lambda L: [r for x in L for r in x]
        if self.label or op == '':
            self.kind = 'label'
        elif op.startswith('v_mfma'):
            self.kind = 'mfma'
            self.dst = R[0]
            self.srcA, self.srcB, self.srcC = R[1], R[2], R[3]
            self.src = flat(R[1:])
            self.passes = 8 if '32x32' in op else (2 if '4x4x4' in op else 4)
        elif op.startswith('buffer_') or op.startswith('global_'):
            self.kind = 'vmem'
            lds = ' lds' in (' ' + mods) or '_lds_' in op
            self.ldsdma = lds
            if '_load' in op and not lds:
                self.dst = R[0]
                self.src = flat(R[1:])
                if 'd16' in op:
                    self.src += R[0]
            elif '_atomic' in op and ' sc0' in (' ' + mods):
                self.dst = R[0]
                self.src = flat(R)
            else:
                self.src = flat(R)
            if lds:
                self.src = self.src + [('m0', 0)]
            self.wide_store = ('_store_dwordx4' in op or '_store_dwordx3' in op)
            if self.wide_store:
                self.sdata = R[0] if op.startswith('buffer_') else R[1]
        elif op.startswith('ds_'):
            self.kind = 'ds'
            if op.startswith('ds_read') or op.startswith('ds_bpermute') or op.startswith('ds_swizzle') or op.startswith('ds_permute'):
                self.dst = R[0]
                self.src = flat(R[1:])
                if 'd16' in op:
                    self.src += R[0]
            else:
                self.src = flat(R)
        elif op.startswith('s_load') or op.startswith('s_memrealtime') or op.startswith('s_memtime') or op.startswith('s_buffer_load'):
            self.kind = 'smem'
            self.dst = R[0]
            self.src = flat(R[1:])
        elif op in ('s_waitcnt', 's_nop', 's_barrier', 's_endpgm', 's_setprio', 's_sleep') or op.startswith('s_cbranch') or op == 's_branch':
            self.kind = 'ctl'
        elif op.startswith('s_'):
            self.kind = 'salu'
            if op.startswith('s_cmp'):
                self.src = flat(R)
            else:
                self.dst = R[0]
                self.src = flat(R[1:])
                if 'saveexec' in op:
                    self.dst = self.dst + [('exec', 0)]
                if op in ('s_addk_i32', 's_mulk_i32'):
                    self.src += R[0]
        elif op.startswith('v_'):
            self.kind = 'valu'
            if op.startswith('v_permlane') and 'swap' in op:
                self.dst = flat(R[:2])
                self.src = flat(R[:2])
            elif '_co_' in op:
                self.dst = flat(R[:2])
                self.src = flat(R[2:])
            else:
                self.dst = R[0]
                self.src = flat(R[1:])
                if op.startswith('v_fmac') or op.startswith('v_dot2c') or op.startswith('v_pk_fmac') or 'dpp' in op:
                    self.src += R[0]
            self.trans = any(op.startswith(t) for t in TRANS)
            self.dot = op.startswith('v_dot')
            self.dpp = 'dpp' in op or 'row_' in mods or 'quad_perm' in mods
            self.perml = op.startswith('v_permlane')
            self.rdlane = op.startswith('v_readlane') or op.startswith('v_readfirstlane') or op.startswith('v_writelane')
        else:
            raise ValueError('unknown instruction: ' + text)
        if 'nodep' in text:
            self.dst = []
        self.dset, self.sset = set(self.dst), set(self.src)

    def states(self):
        if self.kind == 'label':
            return 0
        if self.op == 's_nop':
            return int(self.ops[0], 0) + 1
        return 1


def need_states(p, c):
    n = 0
    pk, ck = p.kind, c.kind
    if pk == 'valu':
        hit = p.dset & c.sset
        vhit = {r for r in hit if r[0] in 'va' and r[0] != 'vcc'}
        shit = {r for r in hit if r[0] in ('s', 'vcc')}
        if vhit:
            if ck == 'mfma':
                n = max(n, 3 if p.dot else 2)
            if p.trans:
                n = max(n, 1)
            if ck == 'valu':
                if c.perml or c.dpp:
                    n = max(n, 2)
                if c.rdlane:
                    n = max(n, 1)
            if p.dot and not (ck == 'valu' and c.op == p.op and c.dset == p.dset and not (p.dset & set(sum([parse_regs(o) for o in c.ops[1:3]], [])))):
                n = max(n, 3)
        if p.dot and (p.dset & c.dset) and not (ck == 'valu' and c.op == p.op):
            n = max(n, 3)
        if shit:
            if ck == 'valu':
                n = max(n, 4 if c.rdlane else 2)
            if ck == 'vmem':
                n = max(n, 5)
            if ck in ('salu', 'smem'):
                n = max(n, 1)
        if ('exec', 0) in p.dset:
            n = max(n, 5)
    if pk == 'mfma':
        big = {8: 12, 4: 8, 2: 5}[p.passes]
        if ck == 'mfma':
            if p.dset & (set(c.srcA) | set(c.srcB)):
                n = max(n, big)
            if p.dset & set(c.srcC):
                if not (c.srcC == p.dst and c.passes == p.passes):
                    n = max(n, {8: 10, 4: 6, 2: 4}[p.passes])
                elif p.passes == 2:
                    n = max(n, 2)
            elif p.dset & c.dset:
                n = max(n, big)
        elif ck in ('valu', 'vmem', 'ds'):
            if p.dset & (c.sset | c.dset):
                n = max(n, big)
            if set(p.srcC) & c.dset:
                n = max(n, {8: 7, 4: 3, 2: 1}[p.passes])
    if pk == 'salu' and ('m0', 0) in p.dset and ('m0', 0) in c.sset and ck == 'vmem':
        n = max(n, 1)
    if pk == 'vmem' and getattr(p, 'wide_store', False):
        if set(p.sdata) & c.dset:
            n = max(n, 2)
    return n


class Kern:
    def __init__(self):
        self.raw = []

    def __call__(self, text):
        for line in text.split('\n'):
            line = line.strip()
            if line and not line.startswith(';'):
                self.raw.append(Inst(line))

    def finish(self):
        out = []
        vm, lg = [], []
        maxvm = 0

        def apply_wait(i):
            nonlocal vm, lg
            m = re.search(r'vmcnt\((\d+)\)', i.text)
            if m:
                n = int(m.group(1))
                vm = vm[len(vm) - n:] if n < len(vm) else vm
                if n == 0:
                    vm = []
            m = re.search(r'lgkmcnt\((\d+)\)', i.text)
            if m:
                n = int(m.group(1))
                if n == 0:
                    lg = []
                elif not any(s for _, s in lg):
                    lg = lg[len(lg) - n:] if n < len(lg) else lg

        saved = {}
        dead = False
        for i in self.raw:
            if i.kind == 'label':
                name = i.text.split(':')[0].strip()
                out.append(i)
                sv = saved.get(name)
                if dead:
                    vm, lg = (list(sv[0]), list(sv[1])) if sv else ([], [])
                elif 'nojoinwait2' in i.text:
                    vm, lg = [], []
                elif 'fallstate' in i.text:
                    assert all(x in lg for x in sv[1]) and not sv[0] and not vm
                elif 'loop' in i.text:
                    pass
                elif 'keepstate' in i.text:
                    vm, lg = list(sv[0]), list(sv[1])
                elif 'nojoinwait' in i.text:
                    assert not any(d for d, _ in vm + lg + sv[0] + sv[1]), 'pending loads at nojoinwait label'
                    vm, lg = [], []
                elif sv is not None and (sv[0] != vm or sv[1] != lg):
                    wi = Inst('s_waitcnt vmcnt(0) lgkmcnt(0)')
                    out.append(wi)
                    vm, lg = [], []
                dead = False
                continue
            if i.op.startswith('s_cbranch') or i.op == 's_branch':
                tgt = i.ops[0]
                if tgt in saved and (saved[tgt][0] != vm or saved[tgt][1] != lg):
                    wi = Inst('s_waitcnt vmcnt(0) lgkmcnt(0)')
                    out.append(wi)
                    vm, lg = [], []
                else:
                    saved[tgt] = (list(vm), list(lg))
                out.append(i)
                if i.op == 's_branch':
                    dead = True
                continue
            if i.op == 's_endpgm':
                out.append(i)
                dead = True
                continue
            if i.op == 's_waitcnt':
                apply_wait(i)
                out.append(i)
                continue
            touch = i.sset | i.dset
            nv = nl = None
            for k, (d, _) in enumerate(vm):
                if d & touch:
                    nv = len(vm) - 1 - k
            for k, (d, s) in enumerate(lg):
                if d & touch:
                    if i.kind == 'ds' and not s and not (d & (i.sset - i.dset)):
                        continue
                    nl = len(lg) - 1 - k
            if nl is not None and any(s for _, s in lg):
                nl = 0
            if nv is not None or nl is not None:
                w = 's_waitcnt'
                if nv is not None:
                    w += f' vmcnt({min(nv, 63)})'
                if nl is not None:
                    w += f' lgkmcnt({min(nl, 15)})'
                wi = Inst(w)
                apply_wait(wi)
                out.append(wi)
            out.append(i)
            if i.kind == 'vmem':
                vm.append((i.dset, False))
                maxvm = max(maxvm, len(vm))
                assert len(vm) <= 63, 'vmcnt overflow at: ' + i.text
            elif i.kind == 'ds':
                lg.append((i.dset, False))
            elif i.kind == 'smem':
                lg.append((i.dset, True))
        res = []
        for i in out:
            if i.kind not in ('label', 'ctl'):
                need = 0
                dist = 0
                for p in reversed(res):
                    if p.op in ('s_endpgm', 's_branch'):
                        break
                    if dist >= 20:
                        break
                    if p.kind not in ('label', 'ctl'):
                        n = need_states(p, i)
                        need = max(need, n - dist)
                    dist += p.states()
                while need > 0:
                    k = min(need, 16)
                    res.append(Inst(f's_nop {k - 1}'))
                    need -= k
            res.append(i)
        self.out = res
        return '\n'.join(('' if i.kind == 'label' else '  ') + i.text for i in res) + '\n'

    def max_regs(self):
        mv = ma = ms = -1
        for i in self.raw:
            for k, n in list(i.dset) + list(i.sset):
                if k == 'v':
                    mv = max(mv, n)
                elif k == 'a':
                    ma = max(ma, n)
                elif k == 's':
                    ms = max(ms, n)
        return mv + 1, ma + 1, ms + 1


def f2u(x):
    return struct.unpack('<I', struct.pack('<f', x))[0]


def fhex(x):
    return '0x%08x' % f2u(x)


def vr(b, n=1, k='v'):
    return f'{k}{b}' if n == 1 else f'{k}[{b}:{b + n - 1}]'


def ar(b, n=1):
    return vr(b, n, 'a')


def sr(b, n=1):
    return vr(b, n, 's')
```

```python
import sys
import os
import math
import numpy as np
from asmlib import Kern, fhex, vr, ar, sr
import maps as M

DIAG = '--diag' in sys.argv
HDIAG = '--hdiag' in sys.argv
SDIAG = '--sdiag' in sys.argv
NAME = 'interleave_layers__spectral_gfnet__linear_attn_block__prompt'

TAB_T1 = 0
TAB_T2 = 6144
TAB_WQW = TAB_T2 + 40960
TAB_WQI = TAB_WQW + 1920 * 4
TAB_WOP = TAB_WQI + 640 * 4
TAB_SLOT = TAB_WOP + 640 * 4
TAB_CP = TAB_SLOT + 324 * 4
TAB_TW = TAB_CP + 4 * 2 * 16 * 16 * 4
TAB_BYTES = TAB_TW + 32768

WS, AUX, TAB, AUX2 = 's[4:7]', 's[8:11]', 's[12:15]', 's[16:19]'


def srd_from_arg(k, base, argoff, nbytes):
    k(f's_load_dwordx2 s[{base}:{base + 1}], s[0:1], {argoff}')
    k(f's_mov_b32 s{base + 2}, {nbytes}')
    k(f's_mov_b32 s{base + 3}, 0x20000')


def srd_tab(k):
    k('s_getpc_b64 s[12:13]')
    k('s_add_u32 s12, s12, tabs@rel32@lo+4')
    k('s_addc_u32 s13, s13, tabs@rel32@hi+12')
    k(f's_mov_b32 s14, {TAB_BYTES}')
    k('s_mov_b32 s15, 0x20000')


def stamp_start(k, kidx):
    if SDIAG:
        k('s_cmp_lg_u32 s2, 0')
        k(f's_cbranch_scc1 sd_{kidx}')
        k('s_memrealtime s[8:9]')
        k('s_load_dwordx2 s[4:5], s[0:1], 56')
        k('s_mov_b32 s6, 256')
        k('s_mov_b32 s7, 0x20000')
        k('s_waitcnt lgkmcnt(0)')
        k('v_mov_b32 v1, s8')
        k('v_mov_b32 v2, 0')
        k('buffer_store_dword v1, v2, s[4:7], 0 offen')
        k('s_endpgm')
        k(f'sd_{kidx}:')
        k('s_cmp_lt_u32 s2, 8')
        k(f's_cbranch_scc0 sd2_{kidx}')
        k('s_endpgm')
        k(f'sd2_{kidx}:')
        k('s_sub_u32 s2, s2, 8')
    if HDIAG:
        k('s_memrealtime s[80:81]')
        k('s_load_dwordx2 s[84:85], s[0:1], 56')
        k(f's_mov_b32 s94, {kidx}')
    if DIAG:
        k('s_memrealtime s[80:81]')
        k('s_memtime s[76:77]')
        k(f's_mov_b32 s94, {M.STAMP + kidx * 262144}')
        for n in range(1, 7):
            k(f's_mov_b32 s{80 + 2 * n}, 0')


def stamp(k, n):
    if DIAG:
        k(f's_memrealtime s[{80 + 2 * n}:{81 + 2 * n}]')
        k('s_waitcnt lgkmcnt(0)' if False else 's_nop 0')


def stamp_end(k, kidx):
    if DIAG:
        k('s_waitcnt vmcnt(0) lgkmcnt(0)')
        k('s_memrealtime s[98:99]')
        k('s_memtime s[78:79]')
        k('s_waitcnt lgkmcnt(0)')
        k('s_sub_u32 s78, s78, s76')
        k('v_mov_b32 v5, s78')
        for n in range(7):
            k(f'v_mov_b32 v{8 + n}, s{80 + 2 * n}')
        k('v_mov_b32 v15, s98')
        k('v_lshrrev_b32 v4, 6, v0')
        k('v_lshlrev_b32 v4, 6, v4')
        k('s_lshl_b32 s95, s2, 9')
        k(f's_add_u32 s95, s95, s94')
        k(f'buffer_store_dwordx4 v[8:11], v4, {WS}, s95 offen')
        k(f'buffer_store_dwordx4 v[12:15], v4, {WS}, s95 offen offset:16')
        k(f'buffer_store_dword v5, v4, {WS}, s95 offen offset:32')


def endk(k, kidx):
    if HDIAG:
        uid = len(k.raw)
        k('s_and_b32 s95, s2, 63')
        k('v_readfirstlane_b32 s86, v0')
        k('s_and_b32 s86, s86, 0xc0')
        k('s_or_b32 s95, s95, s86')
        k('s_cmp_lg_u32 s95, 0')
        k(f's_cbranch_scc1 hd_{kidx}_{uid}')
        k('s_waitcnt vmcnt(0) lgkmcnt(0)')
        k('s_memrealtime s[82:83]')
        k('s_sub_u32 s95, 6, s94')
        k('s_lshl_b32 s95, s95, 9')
        k('s_add_u32 s84, s84, s95')
        k('s_addc_u32 s85, s85, 0')
        k('s_mov_b32 s86, 256')
        k('s_mov_b32 s87, 0x20000')
        k('s_lshl_b32 s95, s94, 3')
        k('s_waitcnt lgkmcnt(0)')
        k('s_sub_u32 s80, 0, s80')
        k('v_mov_b32 v4, s80')
        k('v_mov_b32 v5, s82')
        k('v_mov_b32 v6, 0')
        k('s_mov_b64 exec, 1')
        k('buffer_atomic_umax v4, v6, s[84:87], s95 offen')
        k('buffer_atomic_umax v5, v6, s[84:87], s95 offen offset:4')
        k(f'hd_{kidx}_{uid}: ; nojoinwait2')
    stamp_end(k, kidx)
    k('s_endpgm')


XP = 1296
X_IMG = 16 * XP
E_BYTES = 20480


def fft640_tables(k, vl16, sw):
    for f in range(4):
        k(f'buffer_load_dwordx4 {ar(4 * f, 4)}, {vl16}, {TAB}, 0 offen offset:{1024 * f}')
    k('s_movk_i32 s30, 0x1000')
    for f in range(4, 6):
        k(f'buffer_load_dwordx4 {ar(4 * f, 4)}, {vl16}, {TAB}, s30 offen offset:{1024 * (f - 4)}')
    k(f's_mul_i32 s30, {sw}, 10240')
    k(f's_add_u32 s30, s30, {TAB_T2}')
    for f in range(10):
        if f and f % 4 == 0:
            k('s_add_u32 s30, s30, 4096')
        k(f'buffer_load_dwordx4 {vr(176 + 4 * f, 4)}, {vl16}, {TAB}, s30 offen offset:{1024 * (f % 4)}')


def fft640_tables_dma(k, vl16, swv, base):
    k(f's_mul_i32 s30, {swv}, 6144')
    k(f's_add_u32 m0, s30, {base}')
    for f in range(4):
        k(f'buffer_load_dwordx4 {vl16}, {TAB}, s30 offen offset:{1024 * f} lds')
    k('s_add_u32 s30, s30, 4096')
    k(f's_add_u32 m0, s30, {base}')
    for f in range(2):
        k(f'buffer_load_dwordx4 {vl16}, {TAB}, s30 offen offset:{1024 * f} lds')


def fft640_tables_read(k, vl16, sw, base, vt1, vt2):
    k(f'v_add_u32 {vt1}, {base}, {vl16}')
    k(f's_mul_i32 s30, {sw}, 10240')
    k(f's_add_u32 s30, s30, {TAB_T2}')
    k(f'v_add_u32 {vt2}, s30, {vt1}')
    for f in range(6):
        k(f'ds_read_b128 {ar(4 * f, 4)}, {vt1} offset:{1024 * f}')


def fft640_tables_read2(k, vt2):
    for f in range(10):
        k(f'ds_read_b128 {vr(176 + 4 * f, 4)}, {vt2} offset:{1024 * f}')


B0, B1, D1, PK = 40, 56, 72, 120


def fft640_core_from_rows(k, vA, vB):
    R = 16
    stamp(k, 2)
    for i in range(8):
        k(f'ds_read_b64 {vr(R + 2 * i, 2)}, {vA} offset:{512 * (i // 4) + 32 * (i % 4)}')
    for i in range(2):
        k(f'ds_read_b64 {vr(R + 16 + 2 * i, 2)}, {vB} offset:{32 * i}')
    k('s_mov_b32 s31, 0x05040100')
    k('s_mov_b32 s32, 0x07060302')
    for kk in range(5):
        for q in range(4):
            dst = B0 + 4 * q + kk if kk < 4 else B1 + 4 * q
            sel = 's31' if q % 2 == 0 else 's32'
            k(f'v_perm_b32 v{dst}, v{R + 2 * (2 * kk + 1) + q // 2}, v{R + 2 * (2 * kk) + q // 2}, {sel}')


def fft640_zero_b1(k, keep):
    stamp(k, 1)
    for q in range(4):
        for x in range(keep, 4):
            k(f'v_mov_b32 v{B1 + 4 * q + x}, 0')


def fft640_stage1(k, vEw, mid=None):
    stamp(k, 3)
    for q in range(4):
        for t in range(3):
            d = vr(D1 + 12 * q + 4 * t, 4)
            k(f'v_mfma_f32_16x16x32_bf16 {d}, {ar(8 * t, 4)}, {vr(B0 + 4 * q, 4)}, 0')
    for q in range(4):
        for t in range(3):
            d = vr(D1 + 12 * q + 4 * t, 4)
            k(f'v_mfma_f32_16x16x32_bf16 {d}, {ar(8 * t + 4, 4)}, {vr(B1 + 4 * q, 4)}, {d}')
    if mid:
        mid()
    for i in range(5):
        for ri in range(2):
            sg = 2 * i + ri
            for qq in range(2):
                k(f'v_cvt_pk_bf16_f32 v{PK + 4 * i + 2 * ri + qq}, v{D1 + 12 * (2 * qq) + sg}, v{D1 + 12 * (2 * qq + 1) + sg}')
        k(f'ds_write_b128 {vEw}, {vr(PK + 4 * i, 4)} offset:{1024 * i}')
    k('s_waitcnt lgkmcnt(0)')
    k('s_barrier')


FR, D2 = 16, 72


def fft640_stage2(k, vEr, swapped):
    stamp(k, 4)
    for i in range(5):
        k(f'ds_read_b128 {vr(FR + 4 * i, 4)}, {vEr} offset:{1024 * i}')
    for i in range(5):
        for t in range(2):
            d = vr(D2 + 8 * i + 4 * t, 4)
            T = vr(176 + 8 * i + 4 * t, 4)
            if swapped:
                k(f'v_mfma_f32_16x16x32_bf16 {d}, {vr(FR + 4 * i, 4)}, {T}, 0')
            else:
                k(f'v_mfma_f32_16x16x32_bf16 {d}, {T}, {vr(FR + 4 * i, 4)}, 0')


def fft640_store_normal(k, vout, sbase, bstep, fl=''):
    stamp(k, 5)
    for i in range(5):
        for x in range(4):
            k(f'v_cvt_pk_bf16_f32 v{PK + 4 * i + x}, v{D2 + 8 * i + 2 * x}, v{D2 + 8 * i + 2 * x + 1}')
        k(f'buffer_store_dwordx4 {vr(PK + 4 * i, 4)}, {vout}, {WS}, {sbase} offen{fl}')
        if i < 4:
            k(f's_add_u32 {sbase}, {sbase}, {bstep}')


def touch_code2(k, vt):
    if os.environ.get("NOTC"):
        return
    k('s_getpc_b64 s[52:53]')
    k('s_add_u32 s52, s52, k2_kernel@rel32@lo+4')
    k('s_addc_u32 s53, s53, k2_kernel@rel32@hi+12')
    k('s_mov_b32 s54, text_end-k2_kernel')
    k('s_mov_b32 s55, 0x20000')
    k('s_lshr_b32 s33, s2, 3')
    k('s_lshl_b32 s33, s33, 11')
    k(f'v_lshrrev_b32 {vt}, 5, v0')
    k(f'v_lshlrev_b32 {vt}, 24, {vt}')
    k(f'v_lshl_add_u32 {vt}, v0, 6, {vt}')
    k(f'buffer_load_dword {vt}, {vt}, s[52:55], s33 offen')
    k(f's_add_u32 s33, s33, {TAB_WQW}')
    k('v_lshrrev_b32 v167, 5, v0')
    k('v_lshlrev_b32 v167, 24, v167')
    k('v_lshl_add_u32 v167, v0, 6, v167')
    k(f'buffer_load_dword v167, v167, {TAB}, s33 offen')
    if os.environ.get('DESC', '0') == '1':
        k('s_getpc_b64 s[60:61]')
        k('s_add_u32 s60, s60, desc_start@rel32@lo+4')
        k('s_addc_u32 s61, s61, desc_start@rel32@hi+12')
        k('s_mov_b32 s62, 512')
        k('s_mov_b32 s63, 0x20000')
        k('v_lshlrev_b32 v166, 6, v0')
        k('buffer_load_dword v166, v166, s[60:63], 0 offen')


def touch_tlb(k, vt, shift):
    k('s_lshr_b32 s33, s2, 3')
    k('s_lshl_b32 s33, s33, 8')
    k(f'v_add_lshl_u32 {vt}, s33, v0, {shift}')
    k(f'buffer_load_dword v164, {vt}, {WS}, 0 offen')
    k(f'buffer_load_dword v165, {vt}, s[56:59], 0 offen')


def touch_weights(k, vt, vd):
    if os.environ.get("NOTW"):
        return
    T = int(vt[1:])
    a, b, c = f'v{T + 1}', f'v{T + 2}', f'v{T + 3}'
    k('s_and_b32 s33, s2, 7')
    k('s_lshr_b32 s34, s2, 3')
    k(f'v_lshrrev_b32 {a}, 3, v0')
    k(f'v_mul_u32_u24 {a}, 3840, {a}')
    k(f'v_and_b32 {b}, 7, v0')
    k(f'v_lshl_add_u32 {a}, {b}, 9, {a}')
    k('v_cmp_gt_u32 vcc, 160, v0')
    k(f'v_mov_b32 {c}, 0x40000000')
    k(f'v_cndmask_b32 {a}, {c}, {a}, vcc')
    k(f's_mul_i32 s35, s34, {20 * 3840}')
    k('s_lshl_b32 s36, s33, 6')
    k('s_add_u32 s35, s35, s36')
    k(f'buffer_load_dword v{T + 5}, {a}, s[44:47], s35 offen')
    k(f's_sub_u32 s35, s35, {320 * 3840}')
    k(f'buffer_load_dword {a}, {a}, s[44:47], s35 offen')
    k(f'v_subrev_u32 {vt}, 192, v0')
    k(f'v_mul_u32_u24 {b}, 13, {vt}')
    k(f'v_lshrrev_b32 {b}, 8, {b}')
    k('v_cmp_gt_u32 vcc, 60, ' + vt)
    k(f'v_mul_u32_u24 {c}, 20, {b}')
    k(f'v_sub_u32 {vt}, {vt}, {c}')
    k('s_add_u32 s35, s33, 4')
    k('s_and_b32 s35, s35, 7')
    k(f'v_lshl_add_u32 {b}, {b}, 3, s35')
    k(f'v_mul_u32_u24 {c}, 52, {b}')
    k(f'v_lshrrev_b32 {c}, 8, {c}')
    k(f'v_mul_u32_u24 v{T + 4}, 5, {c}')
    k(f'v_sub_u32 {b}, {b}, v{T + 4}')
    k('s_and_b32 s35, s34, 7')
    k(f'v_lshl_add_u32 {b}, {b}, 3, s35')
    k(f'v_mul_u32_u24 v{T + 4}, 52, {b}')
    k(f'v_lshrrev_b32 v{T + 4}, 8, v{T + 4}')
    k(f'v_mad_u32_u24 {b}, v{T + 4}, 15, {b}')
    k(f'v_mul_u32_u24 {c}, 160, {c}')
    k(f'v_add_u32 {b}, {b}, {c}')
    k(f'v_mul_u32_u24 {b}, 1280, {b}')
    k(f'v_lshl_add_u32 {b}, {vt}, 6, {b}')
    k(f'v_mov_b32 {c}, 0x40000000')
    k(f'v_cndmask_b32 {b}, {c}, {b}, vcc')
    k('s_lshr_b32 s35, s34, 3')
    k(f's_mul_i32 s35, s35, {5 * 1280}')
    k(f'buffer_load_dword v{T + 6}, {b}, s[48:51], s35 offen')
    k(f's_sub_u32 s35, s35, {10 * 1280}')
    k(f'buffer_load_dword {b}, {b}, s[48:51], s35 offen')


K1_LDS = X_IMG + E_BYTES


EARLY = os.environ.get('EARLY', '0') == '1'


def gen_k1():
    k = Kern()
    k('k1_kernel:')
    stamp_start(k, 0)
    k('s_cmp_ge_u32 s2, 256')
    k('s_cbranch_scc1 k1_exit')
    srd_from_arg(k, 4, 64, M.WS_USED)
    srd_from_arg(k, 44, 32, 640 * 3840)
    srd_from_arg(k, 48, 40, 640 * 1280)
    TLB = int(os.environ.get('TLB', '0'))
    if TLB:
        srd_from_arg(k, 56, 48, 2048 * 1280)
    k('s_cmp_ge_u32 s2, 128')
    k('s_cbranch_scc1 k1_f')
    srd_from_arg(k, 8, 0, 2048 * 1280)
    srd_tab(k)
    k('v_and_b32 v1, 63, v0')
    k('v_lshrrev_b32 v2, 6, v0')
    k('v_readfirstlane_b32 s20, v2')
    k('v_lshrrev_b32 v3, 4, v0')
    k('v_and_b32 v4, 15, v0')
    k('s_lshl_b32 s21, s2, 4')
    k('s_mul_i32 s22, s21, 1280')
    k('v_mul_u32_u24 v5, 1280, v3')
    k('v_lshl_add_u32 v5, v4, 4, v5')
    k(f'v_mul_u32_u24 v6, {XP}, v3')
    k('v_lshl_add_u32 v6, v4, 4, v6')
    k('v_lshlrev_b32 v7, 4, v1')
    X = 140
    for i in range(5):
        k(f'buffer_load_dwordx4 {vr(X + 4 * i, 4)}, v5, {AUX}, s22 offen offset:{256 * i}')
    fft640_tables(k, 'v7', 's20')
    touch_code2(k, 'v162')
    if TLB:
        touch_tlb(k, 'v163', TLB)
    k('v_lshrrev_b32 v8, 4, v1')
    k(f'v_mul_u32_u24 v9, {XP}, v4')
    k('s_lshl_b32 s23, s20, 3')
    k('v_add_u32 v9, s23, v9')
    k('v_lshl_add_u32 v10, v8, 7, v9')
    k('v_lshl_add_u32 v11, v8, 6, v9')
    k('v_add_u32 v11, 1024, v11')
    k('v_mul_u32_u24 v12, 5120, v8')
    k('v_lshl_add_u32 v12, v4, 4, v12')
    k('s_lshl_b32 s23, s20, 8')
    k(f's_add_u32 s23, s23, {X_IMG}')
    k('v_add_u32 v12, s23, v12')
    k('s_mul_i32 s23, s20, 5120')
    k(f's_add_u32 s23, s23, {X_IMG}')
    k('v_add_u32 v13, s23, v7')
    k('v_lshlrev_b32 v14, 11, v8')
    k('v_lshl_add_u32 v14, v4, 4, v14')
    k(f's_mul_i32 s24, s20, {5 * 4 * 2048}')
    k('s_lshr_b32 s23, s2, 3')
    k(f's_mul_i32 s23, s23, {M.TS}')
    k('s_add_u32 s24, s24, s23')
    k('s_and_b32 s23, s2, 7')
    k('s_lshl_b32 s23, s23, 8')
    k('s_add_u32 s24, s24, s23')
    k(f's_add_u32 s24, s24, {M.XH0}')
    fft640_zero_b1(k, 1)
    k('v_mov_b32 v36, 0')
    k('v_mov_b32 v37, 0')
    k('v_mov_b32 v38, 0x3f803f80')
    for i in range(5):
        k(f'ds_write_b128 v6, {vr(X + 4 * i, 4)} offset:{256 * i}')
    k('s_waitcnt lgkmcnt(0)')
    k('s_barrier')
    fft640_core_from_rows(k, 'v10', 'v11')
    fft640_stage1(k, 'v12')
    fft640_stage2(k, 'v13', False)
    fft640_store_normal(k, 'v14', 's24', 4 * 2048)
    for i in range(20):
        k(f'v_dot2_f32_bf16 v36, v{X + i}, v{X + i}, v36')
        k(f'v_dot2_f32_bf16 v37, v{X + i}, v38, v37')
    for sh in (8, 4, 2, 1):
        k(f'v_add_f32_dpp v36, v36, v36 row_ror:{sh} row_mask:0xf bank_mask:0xf')
        k(f'v_add_f32_dpp v37, v37, v37 row_ror:{sh} row_mask:0xf bank_mask:0xf')
    k(f'v_mul_f32 v38, {fhex(-1.0 / 640)}, v37')
    k('v_fmac_f32 v36, v38, v37')
    k('v_add_u32 v39, s21, v3')
    k('v_lshlrev_b32 v39, 2, v39')
    k(f's_mov_b32 s25, {M.SSQ0}')
    k(f'buffer_store_dword v36, v39, {WS}, s25 offen')
    endk(k, 0)
    k('k1_f:')
    srd_from_arg(k, 8, 8, 2048 * 642)
    srd_from_arg(k, 16, 16, 2048 * 642)
    srd_tab(k)
    k('s_sub_u32 s20, s2, 128')
    k('s_lshr_b32 s21, s20, 3')
    k('s_and_b32 s22, s20, 7')
    k('s_lshl_b32 s23, s22, 8')
    k('s_lshl_b32 s24, s21, 2')
    k('s_add_u32 s23, s23, s24')
    k('s_mul_i32 s23, s23, 642')
    k('v_lshlrev_b32 v1, 4, v0')
    k('v_cmp_gt_u32 vcc, 161, v0')
    k('v_mov_b32 v2, 0x40000000')
    k('v_cndmask_b32 v2, v2, v1, vcc')
    CH = 2576
    for r in range(4):
        k(f'buffer_load_dwordx4 {vr(16 + 4 * r, 4)}, v2, {AUX}, s23 offen')
        k(f'buffer_load_dwordx4 {vr(32 + 4 * r, 4)}, v2, {AUX2}, s23 offen')
        if r < 3:
            k(f's_add_u32 s23, s23, {64 * 642}')
    k('v_lshrrev_b32 v3, 2, v0')
    k('v_and_b32 v4, 3, v0')
    k('v_lshlrev_b32 v5, 2, v3')
    k(f's_mov_b32 s25, {TAB_SLOT + 4}')
    for i in range(5):
        k(f'buffer_load_dword v{48 + i}, v5, {TAB}, s25 offen offset:{256 * i}')
    if EARLY:
        touch_weights(k, 'v104', None)
    touch_code2(k, 'v13')
    if TLB:
        touch_tlb(k, 'v163', TLB)
    ZB = M.ZERO_END - M.ZERO_START
    per = (ZB + 127) // 128
    assert per <= 4096 and per % 16 == 0, per
    k('v_mov_b32 v8, 0')
    k('v_mov_b32 v9, 0')
    k('v_mov_b32 v10, 0')
    k('v_mov_b32 v11, 0')
    k(f'v_cmp_gt_u32 vcc, {per // 16}, v0')
    k('v_mov_b32 v6, 0x40000000')
    k('v_cndmask_b32 v6, v6, v1, vcc')
    k(f's_mul_i32 s26, s20, {per}')
    k(f's_add_u32 s26, s26, {M.ZERO_START}')
    k(f'buffer_store_dwordx4 v[8:11], v6, {WS}, s26 offen')
    k('v_cmp_gt_u32 vcc, 161, v0')
    k('s_and_saveexec_b64 s[28:29], vcc')
    for r in range(4):
        k(f'ds_write_b128 v1, {vr(16 + 4 * r, 4)} offset:{CH * r}')
        k(f'ds_write_b128 v1, {vr(32 + 4 * r, 4)} offset:{CH * (4 + r)}')
    k('s_mov_b64 exec, s[28:29]')
    k('v_mul_u32_u24 v12, 642, v4')
    k('v_lshl_add_u32 v12, v3, 1, v12')
    k('s_lshl_b32 s27, s22, 6')
    k('s_add_u32 s27, s27, s24')
    k('s_lshl_b32 s27, s27, 4')
    k(f's_add_u32 s27, s27, {M.WT}')
    k('s_waitcnt lgkmcnt(0)')
    k('s_barrier')
    if not EARLY:
        touch_weights(k, 'v104', None)
    for i in range(5):
        for r in range(4):
            k(f'ds_read_u16 v{64 + 4 * i + r}, v12 offset:{CH * r + 2 + 128 * i}')
            k(f'ds_read_u16 v{84 + 4 * i + r}, v12 offset:{CH * (4 + r) + 2 + 128 * i}')
    for i in range(5):
        for r in range(4):
            k(f'v_lshl_or_b32 v{64 + 4 * i + r}, v{84 + 4 * i + r}, 16, v{64 + 4 * i + r}')
        k(f'v_lshl_add_u32 v{48 + i}, v4, 4, v{48 + i}')
        k(f'buffer_store_dwordx4 {vr(64 + 4 * i, 4)}, v{48 + i}, {WS}, s27 offen')
    endk(k, 0)
    k('k1_exit:')
    k('s_endpgm')
    return k


def tables_asm():
    T1 = M.T1table().ravel().view(np.uint32)
    T2 = M.T2table().ravel().view(np.uint32)
    slot = np.zeros(324, np.uint32)
    for cs in range(320):
        slot[M.FREQ[cs]] = cs * 8192
    tw = np.zeros((4, 2, 2, 2, 64, 4), np.float32)
    for w in range(4):
        for T in range(2):
            for l in range(64):
                a, gg = l % 16, l // 16
                for r in range(4):
                    for j, ang in enumerate(((16 * w + a) * (16 * T + 4 * gg + r), (16 * T + a) * (16 * w + 4 * gg + r))):
                        tw[w, j, T, 0, l, r] = math.cos(2 * math.pi * ang / 2048)
                        tw[w, j, T, 1, l, r] = math.sin(2 * math.pi * ang / 2048)
    cp = np.zeros((4, 2, 16, 16), np.uint32)
    for w in range(4):
        for gh in range(2):
            for l in range(16):
                for i in range(5):
                    for t in range(2):
                        cp[w, gh, l, 2 * i + t] = M.WO_POS[32 * (5 * w + i) + 8 * (l // 4) + 4 * t + l % 4]
                    cp[w, gh, l, 10 + i] = M.WO_POS[160 * w + 32 * i + 16 * gh + l]
    allw = np.concatenate([T1, T2, M.WQ_POS_W.astype(np.uint32), M.WQ_POS_I.astype(np.uint32), M.WO_POS.astype(np.uint32), slot, cp.ravel(), tw.ravel().view(np.uint32)])
    assert allw.size * 4 == TAB_BYTES, (allw.size * 4, TAB_BYTES)
    s = '.p2align 8\ntabs:\n'
    for i in range(0, allw.size, 8):
        s += '.long ' + ','.join('0x%x' % x for x in allw[i:i + 8]) + '\n'
    return s


def descriptor(name, k, nvgpr=None):
    mv, ma, ms = k.max_regs()
    acc = max(4, (mv + 3) // 4 * 4)
    nfv = acc + ma if ma > 0 else mv
    return f'''.p2align 6
.amdhsa_kernel {name}
  .amdhsa_next_free_vgpr {nfv}
  .amdhsa_next_free_sgpr {max(ms + 2, 8)}
  .amdhsa_accum_offset {acc}
  .amdhsa_group_segment_fixed_size 0
  .amdhsa_kernarg_size 72
  .amdhsa_user_sgpr_count 2
  .amdhsa_user_sgpr_kernarg_segment_ptr 1
  .amdhsa_system_sgpr_workgroup_id_x 1
.end_amdhsa_kernel
'''


def build(launches, bodies):
    hdr = open('cdna_kernels/' + NAME + '.s.ref').read().split('; Override')[0]
    s = hdr
    for (kn, g, b, lds) in launches:
        s += f'; @launch kernel={kn} grid=({g},1,1) block=({b},1,1) lds={lds}\n'
    s += '.amdgcn_target "amdgcn-amd-amdhsa--gfx950"\n.text\n'
    desc = ''
    for (k, names) in bodies:
        txt = k.finish()
        for n in names:
            txt = txt.replace(f'{n}:\n', f'.globl {n}\n.p2align 8\n.type {n},@function\n{n}:\n')
            desc += descriptor(n, k)
        s += txt
    s += 'text_end:\n.section .rodata,"a"\n.p2align 6\ndesc_start:\n' + desc + tables_asm()
    return s


if __name__ == '__main__':
    import gen_all
    gen_all.main()
```

```python
from gen import *

CM_IMG = 640 * 64 + 40 * 32
TBL = 83200
K2_LDS = TBL + 49152


def cmul(k, RE, IM, C, Sn, T0, T1, P, conj_tw, swap_out):
    n0, n1 = ('', '-') if conj_tw else ('-', '')
    for r in range(4):
        k(f'v_mul_f32 v{T0 + r}, v{RE + r}, v{C + r}')
        k(f'v_mul_f32 v{T1 + r}, v{IM + r}, v{C + r}')
    for r in range(4):
        k(f'v_fma_f32 v{T0 + r}, {n0}v{IM + r}, v{Sn + r}, v{T0 + r}')
        k(f'v_fma_f32 v{T1 + r}, {n1}v{RE + r}, v{Sn + r}, v{T1 + r}')
    for r in range(4):
        if swap_out:
            k(f'v_cvt_pk_bf16_f32 v{P + r}, v{T1 + r}, v{T0 + r}')
        else:
            k(f'v_cvt_pk_bf16_f32 v{P + r}, v{T0 + r}, v{T1 + r}')


def gen_k2():
    k = Kern()
    k('k2_kernel:')
    stamp_start(k, 1)
    k(f's_mov_b32 s40, {M.XH0}')
    k(f's_mov_b32 s41, {M.XH1}')
    k(f's_mov_b32 s42, {M.SSQ0}')
    srd_from_arg(k, 4, 64, M.WS_USED)
    k('s_cmp_lt_u32 s2, 160')
    k('s_cbranch_scc1 k2_col')
    k('s_cmp_lt_u32 s2, 220')
    k('s_cbranch_scc1 k2_b')
    k('s_cmp_lt_u32 s2, 240')
    k('s_cbranch_scc1 k2_c')
    k('s_endpgm')
    k('k5_kernel:')
    stamp_start(k, 4)
    k(f's_mov_b32 s40, {M.XH2}')
    k(f's_mov_b32 s41, {M.XH3}')
    k(f's_mov_b32 s42, {M.SSQ2}')
    srd_from_arg(k, 4, 64, M.WS_USED)
    k('s_cmp_lt_u32 s2, 160')
    k('s_cbranch_scc1 k2_col')
    k('s_cmp_lt_u32 s2, 180')
    k('s_cbranch_scc1 k2_i')
    if os.environ.get('PFWQ'):
        k('s_cmp_lt_u32 s2, 184')
        k('s_cbranch_scc1 k5_end')
        k('s_cmp_ge_u32 s2, 256')
        k('s_cbranch_scc1 k5_end')
        k('s_and_b32 s20, s2, 1')
        k('s_mul_i32 s20, s20, 1638400')
        k(f's_add_u32 s20, s20, {M.WQ}')
        k('s_sub_u32 s21, s2, 184')
        k('s_lshr_b32 s21, s21, 3')
        k(f's_mul_i32 s21, s21, {3 * 65536}')
        k('v_lshlrev_b32 v1, 7, v0')
        k('v_add_u32 v1, s21, v1')
        for i in range(3):
            k(f'v_min_u32 v2, {1638400 - 128}, v1')
            k(f'buffer_load_dword v{4 + i}, v2, {WS}, s20 offen')
            k('v_add_u32 v1, 0x10000, v1')
        k('k5_end: ; nojoinwait2')
    k('s_endpgm')
    k('k2_col:')
    k('v_and_b32 v1, 63, v0')
    k('v_and_b32 v2, 15, v0')
    k('v_bfe_u32 v3, v0, 4, 2')
    k('v_lshrrev_b32 v4, 6, v0')
    k('v_readfirstlane_b32 s20, v4')
    k('s_and_b32 s21, s20, 3')
    k('s_lshr_b32 s22, s20, 2')
    k('s_and_b32 s23, s2, 7')
    k('s_lshr_b32 s24, s2, 4')
    k('s_lshl_b32 s24, s24, 3')
    k('s_add_u32 s23, s23, s24')
    k('s_bfe_u32 s24, s2, 0x10003')
    k('v_lshlrev_b32 v7, 9, v3')
    k('v_lshl_add_u32 v7, v2, 2, v7')
    k('s_lshl_b32 s25, s21, 11')
    k('s_lshl_b32 s26, s22, 6')
    k('s_add_u32 s25, s25, s26')
    k('s_add_u32 s42, s42, s25')
    k(f's_mov_b32 s25, {M.TS}')
    k('v_mul_lo_u32 v6, v3, s25')
    k('v_lshl_add_u32 v6, v2, 4, v6')
    k('s_lshl_b32 s26, s23, 11')
    k('s_lshl_b32 s27, s24, 3')
    k('s_add_u32 s26, s26, s27')
    k(f's_mul_i32 s27, s21, {4 * M.TS}')
    k('s_add_u32 s26, s26, s27')
    k('s_lshl_b32 s27, s22, 8')
    k('s_add_u32 s26, s26, s27')
    k('s_add_u32 s27, s26, s41')
    k('s_add_u32 s26, s26, s40')
    k('s_lshl_b32 s28, s23, 2')
    k('s_lshl_b32 s29, s24, 1')
    k('s_add_u32 s28, s28, s29')
    k('s_add_u32 s28, s28, s22')
    k('s_lshl_b32 s28, s28, 13')
    k(f's_add_u32 s28, s28, {M.WT}')
    k('s_add_u32 s29, s28, 4096')
    k('s_lshl_b32 s30, s21, 4')
    k('v_add_u32 v28, s30, v2')
    k('v_lshl_add_u32 v29, v3, 6, v28')
    k('v_lshlrev_b32 v29, 4, v29')
    XR, SQ, WR = 8, 16, 20
    C1R, C1I, C2R, C2I, T1C, T2C = 32, 48, 64, 80, 96, 112
    XF, DA, DB, P, TA, TB, WFR, WFI = 128, 144, 160, 176, 184, 192, 200, 208
    srd_tab(k)
    k('v_lshlrev_b32 v4, 4, v1')
    k('s_lshl_b32 s36, s21, 13')
    k(f's_add_u32 s36, s36, {TAB_TW}')
    k('s_add_u32 s37, s36, 4096')
    loads = [f'buffer_load_dwordx2 {vr(XR + 2 * r, 2)}, v6, {WS}, s26 offen offset:{512 * r}' for r in range(4)]
    loads += [f'buffer_load_dword v{SQ + r}, v7, {WS}, s42 offen offset:{128 * r}' for r in range(4)]
    loads += [f'buffer_load_dwordx4 {vr(T1C + 4 * i, 4)}, v4, {TAB}, s36 offen offset:{1024 * i}' for i in range(4)]
    loads += [f'buffer_load_dwordx4 {vr(WR, 4)}, v29, {WS}, s28 offen', f'buffer_load_dwordx4 {vr(WR + 4, 4)}, v29, {WS}, s29 offen']
    loads += [f'buffer_load_dwordx4 {vr(T2C + 4 * i, 4)}, v4, {TAB}, s37 offen offset:{1024 * i}' for i in range(4)]
    c = []
    c.append('v_cvt_f32_u32 v30, v28')
    c.append(f'v_mul_f32 v30, {fhex(1 / 64)}, v30')
    c.append('v_cvt_f32_u32 v31, v3')
    c.append('v_mul_f32 v31, 4.0, v31')
    c.append(f'v_mul_f32 v{TA}, v31, v30')
    for r in range(1, 4):
        c.append(f'v_fmamk_f32 v{TA + r}, v30, {fhex(r)}, v{TA}')
    for r in range(4):
        c.append(f'v_cos_f32 v{TA + 4 + r}, v{TA + r}')
        c.append(f'v_sin_f32 v{TA + r}, v{TA + r}')
    c.append('s_mov_b32 s32, 0x80008000')
    c.append(f'v_and_b32 v{TB}, 1, v2')
    c.append(f'v_cmp_ne_u32 s[38:39], 0, v{TB}')
    c.append(f'v_mul_lo_u32 v{TB}, v{TB}, s32')
    c.append(f'v_bfe_u32 v{TB + 2}, v2, 1, 1')
    c.append(f'v_mul_lo_u32 v{TB + 2}, v{TB + 2}, s32')
    c.append(f'v_xor_b32 v{TB + 3}, v{TB + 2}, v{TB}')
    c.append(f'v_xor_b32 v{TB + 1}, s32, v{TB}')
    for r in range(4):
        c.append(f'v_cvt_pk_bf16_f32 v{C1R + r}, v{TA + 4 + r}, v{TA + r}')
        c.append(f'v_cvt_pk_bf16_f32 v{C1I + r}, -v{TA + r}, v{TA + 4 + r}')
    for r in range(4):
        c.append(f'v_cndmask_b32 v{C1R + 4 + r}, v{C1R + r}, v{C1I + r}, s[38:39]')
        c.append(f'v_cndmask_b32 v{C1I + 4 + r}, v{C1I + r}, v{C1R + r}, s[38:39]')
        c.append(f'v_xor_b32 v{C1R + 8 + r}, v{C1R + r}, v{TB}')
        c.append(f'v_xor_b32 v{C1I + 8 + r}, v{C1I + r}, v{TB}')
    for r in range(4):
        c.append(f'v_xor_b32 v{C1R + 12 + r}, v{C1R + 4 + r}, v{TB + 3}')
        c.append(f'v_xor_b32 v{C1I + 12 + r}, v{C1I + 4 + r}, v{TB + 2}')
        c.append(f'v_xor_b32 v{C1R + 4 + r}, v{C1R + 4 + r}, v{TB + 2}')
        c.append(f'v_xor_b32 v{C1I + 4 + r}, v{C1I + 4 + r}, v{TB + 3}')
    c.append('v_cvt_f32_u32 v30, v2')
    c.append(f'v_mul_f32 v30, {fhex(1 / 32)}, v30')
    c.append(f'v_mul_f32 v{TA}, v31, v30')
    for r in range(1, 4):
        c.append(f'v_fmamk_f32 v{TA + r}, v30, {fhex(r)}, v{TA}')
    for r in range(4):
        c.append(f'v_cos_f32 v{TA + 4 + r}, v{TA + r}')
        c.append(f'v_sin_f32 v{TA + r}, v{TA + r}')
    c.append('s_lshl_b32 s33, s20, 10')
    c.append('v_add_u32 v5, s33, v4')
    c.append('s_lshl_b32 s33, s22, 13')
    c.append('v_add_u32 v31, s33, v4')
    c.append('s_lshl_b32 s34, s21, 10')
    c.append('s_add_u32 s34, s34, s33')
    c.append('v_add_u32 v28, s34, v4')
    c.append('s_lshl_b32 s33, s22, 12')
    c.append('v_add_u32 v1, s33, v4')
    for r in range(4):
        c.append(f'v_cvt_pk_bf16_f32 v{C2R + r}, v{TA + 4 + r}, v{TA + r}')
        c.append(f'v_cvt_pk_bf16_f32 v{C2I + r}, -v{TA + r}, v{TA + 4 + r}')
    for r in range(4):
        for B in (C2R, C2I):
            c.append(f'v_xor_b32 v{B + 4 + r}, v{B + r}, v{TB}')
            if r % 2 == 0:
                c.append(f'v_mov_b32 v{B + 8 + r}, v{B + r}')
                c.append(f'v_xor_b32 v{B + 12 + r}, v{B + r}, v{TB}')
            else:
                c.append(f'v_xor_b32 v{B + 8 + r}, s32, v{B + r}')
                c.append(f'v_xor_b32 v{B + 12 + r}, v{B + r}, v{TB + 1}')
    c.append('s_cmp_eq_u32 s2, 0\ns_cselect_b32 s31, 0xffff, -1')
    c.append(f's_mov_b32 s35, {fhex(2.0 ** 22 / 640)}')
    c.append(f'v_mov_b32 v30, {fhex(1e-5 * 2.0 ** 22)}')
    NPRE = int(os.environ.get('K2PRE', '0'))
    for x in c[:NPRE]:
        k(x)
    c = c[NPRE:]
    for x in loads[:8]:
        k(x)
    stamp(k, 1)
    rest = loads[8:]
    step = len(c) // (len(rest) + 1)
    for i, x in enumerate(c):
        k(x)
        if i % step == step - 1 and rest:
            k(rest.pop(0))
    assert not rest
    stamp(k, 2)
    for r in range(4):
        k(f'v_fma_f32 v{SQ + r}, v{SQ + r}, s35, v30')
    for r in range(4):
        k(f'v_rsq_f32 v{SQ + r}, v{SQ + r}')
    for c in range(2):
        for r in range(4):
            k(f'v_lshlrev_b32 v{XF + 8 * c + r}, 16, v{XR + 2 * r + c}')
            k(f'v_and_b32 v{XF + 8 * c + 4 + r}, 0xffff0000, v{XR + 2 * r + c}')
        for h in range(2):
            k(f'v_pk_mul_f32 {vr(TA + 2 * h, 2)}, {vr(XF + 8 * c + 2 * h, 2)}, {vr(SQ + 2 * h, 2)}')
            k(f'v_pk_mul_f32 {vr(TA + 4 + 2 * h, 2)}, {vr(XF + 8 * c + 4 + 2 * h, 2)}, {vr(SQ + 2 * h, 2)}')
        for r in range(4):
            k(f'v_cvt_pk_bf16_f32 v{P + 4 * c + r}, v{TA + r}, v{TA + 4 + r}')
            if c == 0:
                k(f'v_and_b32 v{P + r}, s31, v{P + r}')
        k(f'ds_write_b128 v5, {vr(P + 4 * c, 4)} offset:{8192 * c}')
    k('s_waitcnt lgkmcnt(0)')
    k('s_barrier')
    stamp(k, 3)
    mf = 'v_mfma_f32_16x16x32_bf16'

    def weave(ms, vs):
        n = len(ms)
        for i, m in enumerate(ms):
            k(m)
            for x in vs[len(vs) * i // n:len(vs) * (i + 1) // n]:
                k(x)

    def cm(*a):
        L = []
        cmul(L.append, *a)
        return L

    for T in range(2):
        for t in range(4):
            k(f'ds_read_b128 {ar(16 * T + 4 * t, 4)}, v31 offset:{4096 * T + 1024 * t}')
    M1 = lambda T: [f'{mf} {vr(DA + o + 4 * T, 4)}, {ar(16 * T + 4 * t, 4)}, {vr(C + 4 * t, 4)}, {vr(DA + o + 4 * T, 4) if t else 0}'
                    for t in range(4) for (C, o) in ((C1R, 0), (C1I, 8))]
    M2 = lambda T, Tp: [f'{mf} {vr(DB + o + 4 * Tp, 4)}, {vr(C + 8 * Tp + 4 * T, 4)}, {vr(P + 4 * T, 4)}, {vr(DB + o + 4 * Tp, 4) if T else 0}'
                        for (C, o) in ((C2R, 0), (C2I, 8))]
    M3 = lambda Tp, Tm: [f'{mf} {vr(DA + o + 4 * Tm, 4)}, {vr(TB + 4 * Tp, 4)}, {vr(C + 8 * Tm + 4 * Tp, 4)}, {vr(DA + o + 4 * Tm, 4) if Tp else 0}'
                         for (C, o) in ((C2I, 0), (C2R, 8))]
    unp = []
    for i in range(8):
        unp += [f'v_lshlrev_b32 v{WFR + i}, 16, v{WR + i}', f'v_and_b32 v{WFI + i}, 0xffff0000, v{WR + i}']
    TC = 20
    weave(M1(0), [])
    weave(M1(1)[:3], unp)
    weave(M1(1)[3:], cm(DA, DA + 8, T1C, T1C + 4, TA, TA + 4, P, True, False))
    weave(M2(0, 0) + M2(0, 1), cm(DA + 4, DA + 12, T1C + 8, T1C + 12, TC, TC + 4, P + 4, True, False))
    weave(M2(1, 0) + M2(1, 1), [])
    stamp(k, 4)
    for x in cm(DB, DB + 8, WFR, WFI, TA, TA + 4, TB, False, True):
        k(x)
    weave(M3(0, 0) + M3(0, 1), cm(DB + 4, DB + 12, WFR + 4, WFI + 4, TC, TC + 4, TB + 4, False, True))
    weave(M3(1, 0) + M3(1, 1), [])
    for Tm in range(2):
        cmul(k, DA + 4 * Tm, DA + 8 + 4 * Tm, T2C + 8 * Tm, T2C + 8 * Tm + 4, TA if Tm == 0 else TC, (TA if Tm == 0 else TC) + 4, P + 4 * Tm, False, True)
        k(f'ds_write_b128 v28, {vr(P + 4 * Tm, 4)} offset:{16384 + 4096 * Tm}')
    k('s_waitcnt lgkmcnt(0)')
    k('s_barrier')
    stamp(k, 5)
    for t in range(4):
        for c in range(2):
            k(f'ds_read_b128 {ar(16 * c + 4 * t, 4)}, v1 offset:{16384 + 8192 * c + 1024 * t}')
    for t in range(4):
        for c in range(2):
            for (C, o) in ((C1I, 0), (C1R, 4)):
                d = vr(XF + 8 * c + o, 4)
                k(f'{mf} {d}, {vr(C + 4 * t, 4)}, {ar(16 * c + 4 * t, 4)}, {d}')
    stamp(k, 6)
    for r in range(4):
        for c in range(2):
            k(f'v_cvt_pk_bf16_f32 v{P + 2 * r + c}, v{XF + 8 * c + r}, v{XF + 8 * c + 4 + r}')
        k(f'v_bfi_b32 v{P + 2 * r}, s31, v{P + 2 * r}, v{XR + 2 * r}')
        k(f'buffer_store_dwordx2 {vr(P + 2 * r, 2)}, v6, {WS}, s27 offen offset:{512 * r}')
    endk(k, 1)

    def cm_common(is_id):
        srd_tab(k)
        k('v_and_b32 v1, 63, v0')
        k('v_lshrrev_b32 v2, 6, v0')
        k('v_readfirstlane_b32 s21, v2')
        k('s_and_b32 s20, s21, 3')
        k('s_lshr_b32 s22, s21, 2')
        k('s_sub_u32 s23, s2, 160')
        k('v_lshrrev_b32 v3, 2, v0')
        k('v_and_b32 v4, 3, v0')
        k('v_lshlrev_b32 v7, 4, v1')
        k('v_lshrrev_b32 v6, 4, v3')
        k('v_lshlrev_b32 v6, 5, v6')
        k('v_lshl_add_u32 v6, v3, 6, v6')
        k('v_lshl_add_u32 v6, v4, 4, v6')
        X = 140
        if not is_id:
            k('v_mul_u32_u24 v5, 3840, v3')
            k('v_lshl_add_u32 v5, v4, 4, v5')
            k('s_lshl_b32 s24, s23, 6')
            for i in range(5):
                k(f'buffer_load_dwordx4 {vr(X + 4 * i, 4)}, v5, {AUX}, s24 offen')
                if i < 4:
                    k(f's_add_u32 s24, s24, {128 * 3840}')
        fft640_tables_dma(k, 'v7', 's21', TBL)
        k('v_and_b32 v15, 15, v0')
        k('v_lshrrev_b32 v8, 4, v1')
        k('s_lshl_b32 s25, s23, 5')
        k('s_lshl_b32 s26, s22, 4')
        k('s_add_u32 s25, s25, s26')
        k('v_add_lshl_u32 v9, s25, v15, 2')
        k(f's_mov_b32 s26, {TAB_WQI if is_id else TAB_WQW}')
        k(f'buffer_load_dword v14, v9, {TAB}, s26 offen')
        k('v_bfe_u32 v9, v0, 2, 2')
        k('v_lshl_add_u32 v10, v8, 2, v9')
        k('v_mul_u32_u24 v10, 1056, v10')
        k('v_lshl_add_u32 v10, v4, 3, v10')
        k('s_lshl_b32 s26, s20, 8')
        k('s_lshl_b32 s27, s22, 5')
        k('s_add_u32 s26, s26, s27')
        k('v_add_u32 v10, s26, v10')
        k('v_and_b32 v9, 1, v9')
        k('v_lshl_add_u32 v11, v8, 1, v9')
        k('v_mul_u32_u24 v11, 1056, v11')
        k('v_lshl_add_u32 v11, v4, 3, v11')
        k(f's_add_u32 s26, s26, {32 * 1056}')
        k('v_add_u32 v11, s26, v11')
        k(f's_mul_i32 s27, s22, {E_BYTES}')
        k(f's_add_u32 s27, s27, {CM_IMG}')
        k('v_mul_u32_u24 v12, 5120, v8')
        k('v_lshl_add_u32 v12, v15, 4, v12')
        k('s_lshl_b32 s26, s20, 8')
        k('s_add_u32 s26, s26, s27')
        k('v_add_u32 v12, s26, v12')
        k('s_mul_i32 s26, s20, 5120')
        k('s_add_u32 s26, s26, s27')
        k('v_add_u32 v13, s26, v7')
        k(f's_mul_i32 s24, s20, {5 * 10240}')
        k(f's_add_u32 s24, s24, {M.WQ}')
        fft640_zero_b1(k, 2)
        if is_id:
            for x in range(4):
                k(f'v_mov_b32 v{X + x}, 0')
            for i in range(5):
                k(f'ds_write_b128 v6, {vr(X, 4)} offset:{8448 * i}')
            k('s_waitcnt lgkmcnt(0)')
            k('s_barrier')
            k('s_lshl_b32 s26, s23, 5')
            k('v_add_u32 v20, s26, v0')
            k('v_lshrrev_b32 v21, 4, v20')
            k('v_lshlrev_b32 v21, 5, v21')
            k('v_lshl_add_u32 v21, v20, 6, v21')
            k('v_lshl_add_u32 v21, v0, 1, v21')
            k('v_mov_b32 v22, 0x3f80')
            k('v_cmp_gt_u32 vcc, 32, v0')
            k('s_and_saveexec_b64 s[28:29], vcc')
            k('ds_write_b16 v21, v22')
            k('s_mov_b64 exec, s[28:29]')
        else:
            for i in range(5):
                k(f'ds_write_b128 v6, {vr(X + 4 * i, 4)} offset:{8448 * i}')
        k('s_waitcnt vmcnt(1) lgkmcnt(0)')
        k('s_barrier')
        fft640_tables_read(k, 'v7', 's20', TBL, 'v36', 'v37')
        for q in range(4):
            k(f'ds_read_b64_tr_b16 {vr(B0 + 4 * q, 2)}, v10 offset:{64 * q}')
            k(f'ds_read_b64_tr_b16 {vr(B0 + 4 * q + 2, 2)}, v10 offset:{64 * q + 16 * 1056}')
            k(f'ds_read_b64_tr_b16 {vr(B1 + 4 * q, 2)}, v11 offset:{64 * q}')
        k('v_lshrrev_b32 v9, 1, v8')
        k('v_mul_u32_u24 v9, 5120, v9')
        k('v_and_b32 v8, 1, v8')
        k('v_lshl_add_u32 v9, v8, 9, v9')
        k('v_add_u32 v14, v14, v9')
        fft640_stage1(k, 'v12', lambda: fft640_tables_read2(k, 'v37'))
        fft640_stage2(k, 'v13', False)
        if not is_id:
            k('s_cmp_eq_u32 s20, 0')
            k('s_cselect_b32 s26, 16, 0')
            k('v_cmp_gt_u32 vcc, s26, v1')
            k(f'v_cndmask_b32 v{D2 + 1}, v{D2 + 1}, 0, vcc' if False else f'v_mov_b32 v20, 0')
            k(f'v_cndmask_b32 v{D2 + 1}, v{D2 + 1}, v20, vcc')
        fft640_store_normal(k, 'v14', 's24', 10240, ' sc1')
        endk(k, 1)

    k('k2_b:')
    srd_from_arg(k, 8, 32, 640 * 3840)
    cm_common(False)
    k('k2_i:')
    cm_common(True)

    k('k2_c:')
    srd_from_arg(k, 8, 40, 640 * 1280)
    srd_tab(k)
    k('v_and_b32 v1, 63, v0')
    k('v_lshrrev_b32 v2, 6, v0')
    k('v_readfirstlane_b32 s21, v2')
    k('s_and_b32 s20, s21, 3')
    k('s_lshr_b32 s22, s21, 2')
    k('s_sub_u32 s23, s2, 220')
    k('s_mul_i32 s24, s23, 52')
    k('s_lshr_b32 s24, s24, 8')
    k('s_mul_i32 s25, s24, 5')
    k('s_sub_u32 s25, s23, s25')
    k('v_bfe_u32 v3, v0, 4, 4')
    k('v_and_b32 v4, 15, v0')
    k('v_and_b32 v5, 7, v3')
    k('s_lshl_b32 s25, s25, 3')
    k('v_add_u32 v5, s25, v5')
    k('v_mul_u32_u24 v6, 52, v5')
    k('v_lshrrev_b32 v6, 8, v6')
    k('v_mul_u32_u24 v6, 15, v6')
    k('v_add_u32 v5, v5, v6')
    k('v_lshrrev_b32 v6, 3, v3')
    k('v_mul_u32_u24 v6, 5, v6')
    k('v_add_u32 v5, v5, v6')
    k('s_mul_i32 s24, s24, 160')
    k('s_mul_i32 s25, s22, 10')
    k('s_add_u32 s24, s24, s25')
    k('v_add_u32 v5, s24, v5')
    k('v_mul_u32_u24 v5, 1280, v5')
    k('v_lshl_add_u32 v5, v4, 4, v5')
    X = 140
    for i in range(5):
        k(f'buffer_load_dwordx4 {vr(X + 4 * i, 4)}, v5, {AUX}, 0 offen offset:{256 * i}')
    k('v_lshlrev_b32 v7, 4, v1')
    fft640_tables_dma(k, 'v7', 's21', TBL)
    k(f's_mul_i32 s27, s22, {X_IMG + E_BYTES}')
    k(f'v_mul_u32_u24 v6, {XP}, v3')
    k('v_lshl_add_u32 v6, v4, 4, v6')
    k('v_add_u32 v6, s27, v6')
    k('v_lshrrev_b32 v8, 4, v1')
    k('v_lshrrev_b32 v9, 1, v8')
    k('v_lshl_add_u32 v9, v9, 4, v4')
    k('v_lshlrev_b32 v9, 6, v9')
    k('s_lshl_b32 s26, s20, 11')
    k(f's_add_u32 s26, s26, {TAB_CP}')
    POS = 160
    for i in range(4):
        k(f'buffer_load_dwordx4 {vr(POS + 4 * i, 4)}, v9, {TAB}, s26 offen offset:{16 * i}')
    k(f'v_mul_u32_u24 v9, {XP}, v4')
    k('s_lshl_b32 s26, s20, 3')
    k('s_add_u32 s26, s26, s27')
    k('v_add_u32 v9, s26, v9')
    k('v_lshl_add_u32 v10, v8, 7, v9')
    k('v_lshl_add_u32 v11, v8, 6, v9')
    k('v_add_u32 v11, 1024, v11')
    k('v_mul_u32_u24 v12, 5120, v8')
    k('v_lshl_add_u32 v12, v4, 4, v12')
    k('s_lshl_b32 s26, s20, 8')
    k('s_add_u32 s26, s26, s27')
    k(f's_add_u32 s26, s26, {X_IMG}')
    k('v_add_u32 v12, s26, v12')
    k('s_mul_i32 s26, s20, 5120')
    k('s_add_u32 s26, s26, s27')
    k(f's_add_u32 s26, s26, {X_IMG}')
    k('v_add_u32 v13, s26, v7')
    k('v_and_b32 v14, 1, v8')
    k('v_bfe_u32 v15, v0, 2, 2')
    k('v_lshl_add_u32 v15, v14, 3, v15')
    k(f'v_mul_u32_u24 v15, {XP}, v15')
    k('v_and_b32 v36, 3, v0')
    k('v_lshl_add_u32 v15, v36, 3, v15')
    k('v_lshrrev_b32 v36, 1, v8')
    k('v_lshl_add_u32 v15, v36, 5, v15')
    k('s_mul_i32 s26, s20, 320')
    k('s_add_u32 s26, s26, s27')
    k('v_add_u32 v15, s26, v15')
    k('s_mul_i32 s24, s23, 5120')
    k('s_lshl_b32 s25, s22, 9')
    k('s_add_u32 s24, s24, s25')
    k(f's_add_u32 s25, s24, {M.WOT}')
    k(f's_add_u32 s24, s24, {M.WOF}')
    k('v_lshlrev_b32 v37, 8, v14')
    k('v_lshlrev_b32 v38, 8, v36')
    k('v_lshl_add_u32 v38, v14, 3, v38')
    fft640_zero_b1(k, 1)
    for i in range(5):
        k(f'ds_write_b128 v6, {vr(X + 4 * i, 4)} offset:{256 * i}')
    k('s_waitcnt vmcnt(4) lgkmcnt(0)')
    k('s_barrier')
    fft640_tables_read(k, 'v7', 's20', TBL, 'v36', 'v39')
    fft640_core_from_rows(k, 'v10', 'v11')
    for i in range(5):
        k(f'ds_read_b64_tr_b16 {vr(X + 4 * i, 2)}, v15 offset:{64 * i}')
        k(f'ds_read_b64_tr_b16 {vr(X + 4 * i + 2, 2)}, v15 offset:{64 * i + 4 * XP}')

    def mid():
        fft640_tables_read2(k, 'v39')
        for i in range(5):
            k(f'v_add_u32 v{POS + 10 + i}, v{POS + 10 + i}, v37')
            k(f'buffer_store_dwordx4 {vr(X + 4 * i, 4)}, v{POS + 10 + i}, {WS}, s25 offen sc1')
    fft640_stage1(k, 'v12', mid)
    fft640_stage2(k, 'v13', True)
    for i in range(5):
        for t in range(2):
            p = PK + 4 * i + 2 * t
            k(f'v_cvt_pk_bf16_f32 v{p}, v{D2 + 8 * i + 4 * t}, v{D2 + 8 * i + 4 * t + 1}')
            k(f'v_cvt_pk_bf16_f32 v{p + 1}, v{D2 + 8 * i + 4 * t + 2}, v{D2 + 8 * i + 4 * t + 3}')
            k(f'v_add_u32 v{POS + 2 * i + t}, v{POS + 2 * i + t}, v38')
            k(f'buffer_store_dwordx2 {vr(p, 2)}, v{POS + 2 * i + t}, {WS}, s24 offen')
    endk(k, 1)
    return k
```

```python
from gen import *
import os
X = set(os.environ.get('XK3', '').split(','))

ROWMAP = os.environ.get('ROWMAP', '0') == '1'
LOG2E = math.log2(math.e)
LN2 = math.log(2.0)
K3_BLOCK = 512
RG = 40960
H2 = 3 * RG
RB = H2 + 16384
FL = RB + 1536
K3_LDS = RB + 2048
K6_LDS = K3_LDS


class Stream:
    def __init__(self):
        self.l = []

    def __call__(self, t):
        self.l.append(t)


def gen_k3(is6):
    k = Kern()
    nm = 'k6' if is6 else 'k3'
    NT = 5 if is6 else 4
    NA = 2
    XIN = M.XH3 if is6 else M.XH1
    PQ = M.PQ2 if is6 else M.PQ1
    KVS = M.KVS2 if is6 else M.KVS1
    mf = 'v_mfma_f32_32x32x16_bf16'
    m4 = 'v_mfma_f32_4x4x4_16b_bf16'
    region = {0: 0, 1: RG, 2: 2 * RG, 3: 0, 4: 2 * RG}
    uid = [0]
    k(f'{nm}_kernel:')
    stamp_start(k, 5 if is6 else 2)
    k('s_cmp_ge_u32 s2, 256')
    k(f's_cbranch_scc1 {nm}_exit')
    srd_from_arg(k, 4, 64, M.WS_USED)
    k('v_lshrrev_b32 v1, 6, v0')
    k('v_readfirstlane_b32 s19, v1')
    k('v_and_b32 v1, 63, v0')
    k('v_lshlrev_b32 v1, 4, v1')
    if ROWMAP:
        k('s_and_b32 s21, s2, 7')
        k('s_lshl_b32 s21, s21, 1')
        k('s_lshr_b32 s22, s2, 7')
        k('s_add_u32 s21, s21, s22')
        k('s_bfe_u32 s22, s2, 0x40003')
    else:
        k('s_bfe_u32 s21, s2, 0x20001')
        k('s_lshl_b32 s21, s21, 2')
        k('s_lshr_b32 s22, s2, 6')
        k('s_add_u32 s21, s21, s22')
        k('s_and_b32 s22, s2, 1')
        k('s_lshl_b32 s22, s22, 3')
        k('s_bfe_u32 s23, s2, 0x30003')
        k('s_add_u32 s22, s22, s23')
    k('s_and_b32 s20, s19, 3')
    k(f's_mul_i32 s23, s21, {M.TS}')
    k('s_mul_i32 s43, s22, 10240')
    k('s_add_u32 s43, s43, s23')
    k('s_mul_i32 s28, s22, 204800')
    k('s_mul_i32 s27, s20, 5120')
    k('s_add_u32 s28, s28, s27')
    k(f's_add_u32 s28, s28, {M.WQ}')
    k('s_lshl_b32 s29, s20, 10')
    k('s_lshr_b32 s24, s19, 2')
    k(f's_mul_i32 s25, s24, {RG}')
    k('s_add_u32 s25, s25, s29')
    k('s_lshl_b32 s24, s24, 10')
    k('s_add_u32 s24, s24, s28')
    for i in range(3):
        k(f's_add_u32 m0, s25, {4096 * i}')
        k(f'buffer_load_dwordx4 v1, {WS}, s24 offen lds')
        if i < 2:
            k('s_add_u32 s24, s24, 20480')
    k('s_cmp_ge_u32 s19, 4')
    k(f's_cbranch_scc1 {nm}_h')
    ACC, BF, A0, SQ = 8, 72, 96, 56
    S = lambda s: ACC + 16 * s
    k('v_and_b32 v2, 31, v0')
    k('v_bfe_u32 v3, v0, 5, 1')
    k('s_lshl_b32 s24, s20, 9')
    k('v_lshl_add_u32 v7, v2, 4, s24')
    k('v_lshl_add_u32 v7, v3, 11, v7')
    k('v_add_u32 v5, 4096, v7')
    k(f's_add_u32 s25, s23, {XIN}')
    k('s_add_u32 s28, s28, 3072')
    issued = []
    ops = [('A', 0, i) for i in range(40)]
    for t in range(3, NT):
        ops += [('P', t, i) for i in range(10)]
    gate = {'t': 2}

    def issue(n=1):
        for _ in range(n):
            if not ops or (ops[0][0] == 'P' and ops[0][1] > gate['t']):
                return
            op = ops.pop(0)
            kind, c, i = op
            if kind == 'A':
                k(f'buffer_load_dwordx4 {vr(A0 + 4 * i, 4)}, {"v7" if i % 2 == 0 else "v5"}, {WS}, s25 offen')
                if i % 2:
                    k('s_add_u32 s25, s25, 8192')
            else:
                k(f's_add_u32 m0, s29, {region[c] + 4096 * i}')
                k(f'buffer_load_dwordx4 v1, {WS}, s28 offen lds')
                k(f's_add_u32 s28, s28, {20480 if i < 9 else 1024 - 9 * 20480}')
            issued.append(op)

    issue(4)
    k('s_mul_i32 s27, s20, 384')
    k(f's_add_u32 s27, s27, {RB}')
    k('v_cmp_eq_u32 s[30:31], 0, v3')
    k('v_mov_b32 v44, -1')
    k('v_mov_b32 v45, 0xffff')
    k('v_cndmask_b32 v44, v44, v45, s[30:31]')
    for i, b in enumerate((0, 1, 3, 4)):
        k(f'v_and_b32 v45, {1 << b}, v2')
        k(f'v_cmp_ne_u32 s[{32 + 2 * i}:{33 + 2 * i}], 0, v45')
    k('v_bfe_u32 v45, v2, 2, 1')
    k('v_cmp_eq_u32 s[40:41], v45, v3')
    k('v_add_u32 v3, 0x10000, v1')
    k('s_lshl_b32 s24, s20, 13')
    k(f's_add_u32 s24, s24, {RG}')
    k('v_add_u32 v6, s24, v1')
    k('s_lshl_b32 s24, s20, 12')
    k(f's_add_u32 s24, s24, {H2}')
    k('v_add_u32 v4, s24, v1')
    k('s_lshl_b32 s24, s20, 2')
    k(f's_add_u32 s24, s24, {FL}')
    k('v_mov_b32 v2, s24')
    NB, AH = 6, 4

    def seq(n):
        return (n % 2, n // 2) if n < 80 else (n // 40, n % 40)

    def read_b(n):
        t, ks = seq(n)
        off = region[t] + ks * 1024
        a, o = ('v1', off) if off < 65536 else ('v3', off - 65536)
        k(f'ds_read_b128 {vr(BF + 4 * (n % NB), 4)}, {a} offset:{o}')

    tmp = S(1)

    def g_count(off):
        k('s_mov_b64 exec, 1')
        k(f'ds_add_u32 v{tmp + 2}, v{tmp + 3} offset:{off}')
        k('s_mov_b64 exec, -1')

    def g_poll(off):
        k(f'ds_read_b32 v{tmp + 1}, v{tmp + 2} offset:{off}')

    def g_check(off, val):
        uid[0] += 1
        u = f'{nm}_g{uid[0]}'
        k(f'v_readfirstlane_b32 s26, v{tmp + 1}')
        k(f's_cmp_ge_u32 s26, {val}')
        k(f's_cbranch_scc1 {u}_ok')
        k(f'{u}_sp: ; loop')
        k(f'ds_read_b32 v{tmp + 1}, v{tmp + 2} offset:{off}')
        k('s_waitcnt lgkmcnt(0)')
        k(f'v_readfirstlane_b32 s26, v{tmp + 1}')
        k(f's_cmp_ge_u32 s26, {val}')
        k(f's_cbranch_scc0 {u}_sp')
        k(f'{u}_ok: ; keepstate')

    slot = {0: 0, 1: 1, 2: 2, 3: 3, 4: 0}
    e = Stream()
    for q in range(4):
        e(f'ds_write_b128 v6, {vr(S(0) + 4 * q, 4)} offset:{1024 * q}')
    if 'gram' in X:
        step = 1
        for i in range(4):
            for j in range(0, 16, 2 * step):
                e(f'v_cndmask_b32 v{SQ + j}, v{SQ + j}, v{SQ + j + step}, s[{32 + 2 * i}:{33 + 2 * i}]')
            step *= 2
        e(f'v_cndmask_b32 v{SQ}, 0, v{SQ}, s[40:41]')
    else:
        for j in range(0, 8, 2):
            e(f'v_cndmask_b32 v{SQ + j}, v{SQ + j}, v{SQ + j + 1}, s[32:33]')
        for j in (0, 4):
            e(f'v_cndmask_b32 v{SQ + j}, v{SQ + j}, v{SQ + j + 2}, s[34:35]')
        e(f'v_add_f32 v{SQ}, v{SQ}, v{SQ + 4}')
    e('v_lshrrev_b32 v64, 2, v1')
    e('v_add_u32 v64, s27, v64')
    e(f'v_mov_b32 v{SQ + 1}, v{SQ}')
    e(f'v_mov_b32 v{SQ + 2}, {fhex(1e-5 * LN2 * LN2)}')
    e(f'ds_write_b128 v6, {vr(S(1), 4)} offset:4096')
    e(f'v_permlane32_swap_b32 v{SQ}, v{SQ + 1}')
    e(f'v_add_f32 v{SQ}, v{SQ}, v{SQ + 1}')
    e(f'v_fmamk_f32 v{SQ}, v{SQ}, {fhex(LN2 * LN2 / 640)}, v{SQ + 2}')
    e(f'v_rsq_f32 v5, v{SQ}')
    e(f'ds_write_b128 v6, {vr(S(1) + 4, 4)} offset:5120')
    e(f'v_mul_f32 v{SQ + 1}, {fhex(LN2)}, v5')
    e(f'v_cndmask_b32 v{SQ + 1}, v{SQ + 1}, v5, s[30:31]')
    e(f'ds_write_b32 v64, v{SQ + 1}')
    e('v_mov_b32 v0, 1')
    e('ds_write_b32 v2, v0 offset:16')
    e(f'ds_write_b128 v6, {vr(S(1) + 8, 4)} offset:6144')
    e(f'ds_write_b128 v6, {vr(S(1) + 12, 4)} offset:7168')
    e(f'v_mov_b32 v{SQ + 3}, 2')
    e(f'ds_write_b32 v2, v{SQ + 3} offset:16')
    e(f'v_mov_b32 v{tmp + 2}, {FL}')
    e(f'v_mov_b32 v{tmp + 3}, 1')
    e('AT122')
    for q in range(4):
        e(f'ds_write_b128 v4, {vr(S(2) + 4 * q, 4)} offset:{1024 * q}')
    e('v_mov_b32 v0, 3')
    e('ds_write_b32 v2, v0 offset:16')
    e('AT162')
    TM, TE = S(3), S(2)
    e(f'v_mov_b32 v6, {fhex(1e-6 * LOG2E)}')
    e(f's_mov_b32 s39, {fhex(LN2)}')
    e(f's_add_u32 s44, s43, {PQ}')
    for r in range(16):
        e(f'v_mul_f32 v{TM + r}, v{TM + r}, v5')
        e(f'v_min_f32 v{TE + r}, 0, v{TM + r}')
        e(f'v_exp_f32 v{TE + r}, v{TE + r}')
        e(f'v_max_f32 v{TM + r}, v6, v{TM + r}')
        if r >= 1:
            e(f'v_fma_f32 v{TM + r - 1}, v{TM + r - 1}, s39, v{TE + r - 1}')
        if r >= 2 and r % 2 == 0:
            e(f'v_cvt_pk_bf16_f32 v{TE + r // 2 - 1}, v{TM + r - 2}, v{TM + r - 1}')
        if r == 8:
            e(f'buffer_store_dwordx4 {vr(TE, 4)}, v7, {WS}, s44 offen')
            e('s_add_u32 s44, s44, 4096')
    e(f'v_fma_f32 v{TM + 15}, v{TM + 15}, s39, v{TE + 15}')
    e(f'v_cvt_pk_bf16_f32 v{TE + 7}, v{TM + 14}, v{TM + 15}')
    e(f'buffer_store_dwordx4 {vr(TE + 4, 4)}, v7, {WS}, s44 offen')
    q = {'n': 0}

    def drain(st, n):
        while n > 0 and st.l:
            if st.l[0].startswith('AT'):
                if q['n'] < int(st.l[0][2:]) and n < 1000:
                    return
                st.l.pop(0)
                continue
            t = st.l.pop(0)
            k(t)
            if t.startswith('buffer_'):
                issued.append(('S', 0, 0))
            n -= 1

    def landed(t, off):
        last = max(i for i, x in enumerate(issued) if x[0] == 'P' and x[1] == t)
        assert not any(x[0] == 'P' and x[1] == t for x in ops)
        k(f's_waitcnt vmcnt({len(issued) - 1 - last})')
        g_count(off)

    NP = 40 * NT
    issue(4)
    k('s_waitcnt vmcnt(8)')
    k('s_barrier')
    stamp(k, 1)
    for n in range(AH):
        read_b(n)
    for n in range(NP):
        t, ks = seq(n)
        nn = n + AH
        q['n'] = n
        if nn in (24, 48):
            k('s_barrier')
        if nn == 80:
            k('s_waitcnt lgkmcnt(0)')
            k('s_barrier')
            gate['t'] = 3
        for tt in range(3, NT):
            base = 40 * tt
            if nn == base - 6:
                landed(tt, 64 + 8 * (tt - 3))
            if nn == base - 3:
                g_poll(64 + 8 * (tt - 3))
            if nn == base:
                g_check(64 + 8 * (tt - 3), 4)
        if nn == 93:
            g_poll(76)
        if nn == 96:
            g_check(76, 4)
        if is6:
            if nn == 122:
                k('s_waitcnt lgkmcnt(2)')
                g_count(68)
            if nn == 126:
                g_poll(68)
            if nn == 130:
                g_check(68, 4)
                gate['t'] = 4
        if nn < NP:
            read_b(nn)
        d = vr(S(slot[t]), 16)
        B, A = vr(BF + 4 * (n % NB), 4), vr(A0 + 4 * ks, 4)
        x, y = (A, B) if t <= 2 else (B, A)
        k(f'{mf} {d}, {x}, {y}, {d if ks else 0}')
        if n < 80:
            if n % 2 == 0 or n < 8:
                issue(1)
            if 'gram' in X:
                if t == 0:
                    r = vr(A0 + 4 * ks, 4)
                    sq = vr(SQ, 16)
                    r2 = r
                    if n == 0:
                        k(f'v_and_b32 v40, v{A0}, v44')
                        for x in range(1, 4):
                            k(f'v_mov_b32 v{40 + x}, v{A0 + x}')
                        r2 = 'v[40:43]'
                    k(f'{mf} {sq}, {r}, {r2}, {sq if ks else 0}')
            else:
                r = vr(A0 + 4 * ks + 2 * t, 2)
                sq = vr(SQ + 4 * t, 4)
                if n == 0:
                    k(f'v_and_b32 v40, v{A0}, v44')
                    k(f'v_mov_b32 v41, v{A0 + 1}')
                    r = 'v[40:41]'
                k(f'{m4} {sq}, {r}, {r}, {sq if ks else 0}')
            if n == 40:
                stamp(k, 2)
        else:
            if n >= 90 or n % 2 == 0:
                issue(1)
            if ks == 0:
                stamp(k, 1 + t)
            if n >= 81:
                drain(e, 8 if n < 88 else 3)
    assert not ops
    if not is6:
        stamp(k, 5)
    drain(e, 10000)
    if is6:
        k(f's_add_u32 s47, s43, {M.X3}')
        for gq in range(2):
            for x in range(4):
                r = 8 * gq + 2 * x
                k(f'v_cvt_pk_bf16_f32 v{BF + 4 * gq + x}, v{S(0) + r}, v{S(0) + r + 1}')
            k(f'buffer_store_dwordx4 {vr(BF + 4 * gq, 4)}, v7, {WS}, s47 offen')
            k('s_add_u32 s47, s47, 4096')
    stamp(k, 6)
    if DIAG or HDIAG:
        k('s_lshl_b32 s19, s19, 6')
        k('v_mov_b32 v0, s19')
    endk(k, 2)

    k(f'{nm}_h:')
    k('s_add_u32 s26, s28, 2048')
    k(f's_add_u32 s28, s28, {3 * 20480}')
    hiss = [('Q', 0), ('Q', 1), ('Q', 2)]

    def h_q(i):
        for c in range(2):
            k(f's_add_u32 m0, s29, {c * (RG - 1024) + 4096 * i}')
            k(f'buffer_load_dwordx4 v1, {WS}, s28 offen offset:{1024 * c} lds')
            hiss.append(('Q', i))
        k('s_add_u32 s28, s28, 20480')

    def h_p(i):
        k(f's_add_u32 m0, s29, {2 * RG + 4096 * i}')
        k(f'buffer_load_dwordx4 v1, {WS}, s26 offen lds')
        k('s_add_u32 s26, s26, 20480')
        hiss.append(('P', i))

    def h_bar(pred):
        last = max(i for i, t in enumerate(hiss) if pred(t))
        k(f's_waitcnt vmcnt({len(hiss) - 1 - last}) lgkmcnt(0)')
        k('s_barrier')

    def count(off):
        k('s_mov_b64 exec, 1')
        k(f'ds_add_u32 v20, v21 offset:{off}')
        k('s_mov_b64 exec, -1')

    def spin(vaddr, off, val):
        uid[0] += 1
        u = f'{nm}_h{uid[0]}'
        k(f'{u}: ; loop')
        if 'slp' in X:
            k('s_sleep 1')
        k(f'ds_read_b32 v22, {vaddr} offset:{off}')
        k('s_waitcnt lgkmcnt(0)')
        k('v_readfirstlane_b32 s68, v22')
        k(f's_cmp_ge_u32 s68, {val}')
        k(f's_cbranch_scc0 {u}')

    k('v_and_b32 v9, 31, v0')
    k('v_lshlrev_b32 v9, 2, v9')
    k(f'v_add_u32 v9, {FL}, v9')
    k('v_mov_b32 v8, 0')
    k('ds_write_b32 v9, v8')
    k(f'v_mov_b32 v20, {FL}')
    k('v_mov_b32 v21, 1')
    stamp(k, 1)
    su = Stream()
    su('v_and_b32 v2, 31, v0')
    su('v_bfe_u32 v3, v0, 5, 1')
    su('s_lshl_b32 s30, s20, 9')
    su('v_lshl_add_u32 v4, v2, 4, s30')
    ID, HA, RR, RS2, TM, TE, PP, MA, MB, DKV, DT, ST = 32, 40, 88, 104, 120, 136, 152, 176, 184, 192, 224, 120
    su('v_lshlrev_b32 v11, 2, v3')
    su('v_sub_u32 v11, v2, v11')
    su('v_and_b32 v12, 1, v11')
    su('v_lshlrev_b32 v12, 4, v12')
    su('v_mov_b32 v13, 0x3f80')
    su('v_lshlrev_b32 v12, v12, v13')
    su('v_or_b32 v11, 1, v11')
    for s in range(2):
        for q in range(4):
            K0 = 16 * s + 8 * (q // 2) + 2 * (q % 2)
            su(f'v_cmp_eq_u32 vcc, {K0 + 1}, v11\nv_cndmask_b32 v{ID + 4 * s + q}, 0, v12, vcc')
    su('v_cmp_gt_u32 s[30:31], 8, v2')
    su('v_cmp_gt_u32 s[32:33], 16, v2')
    su('v_cmp_eq_u32 s[34:35], 4, v2')
    su('v_cmp_eq_u32 s[36:37], 11, v2')
    su('s_or_b64 s[34:35], s[34:35], s[36:37]')
    su('v_subrev_u32 v12, 8, v2')
    su('v_cmp_gt_u32 s[36:37], 16, v12')
    su('v_mov_b32 v13, 0xff800000')
    su(f'v_mov_b32 v14, {fhex(1e-6 * LOG2E)}')
    su('v_cndmask_b32 v15, v14, v13, s[36:37]')
    su('v_cndmask_b32 v13, 0, v13, s[36:37]')
    su(f's_mov_b32 s39, {fhex(LN2)}')
    su('v_mov_b32 v11, 0x3f803f80')
    su('s_mul_i32 s38, s20, 384')
    su(f's_add_u32 s38, s38, {RB}')
    su('v_mov_b32 v9, 1.0')
    su('v_lshl_add_u32 v17, v2, 2, s38')
    su('ds_write_b32 v17, v9 offset:256')
    su('v_lshl_add_u32 v17, v3, 4, s38')
    su('v_subrev_u32 v9, 4, v2')
    su('v_cmp_gt_u32 vcc, 8, v9\nv_add_u32 v9, 128, v17\nv_cndmask_b32 v18, v17, v9, vcc')
    su('s_lshl_b32 s38, s20, 12')
    su(f's_add_u32 s38, s38, {H2}')
    su('v_add_u32 v16, s38, v1')
    su('s_lshl_b32 s38, s20, 13')
    su(f's_add_u32 s38, s38, {RG}')
    su('v_add_u32 v6, s38, v1')
    su('v_lshrrev_b32 v9, 1, v1')
    su('v_add_u32 v7, s38, v9')
    su('s_mul_i32 s38, s20, 1536')
    su(f's_add_u32 s38, s38, {RG}')
    su('v_add_u32 v12, s38, v9')
    su('s_lshl_b32 s38, s20, 2')
    su(f's_add_u32 s38, s38, {FL}')
    su('v_mov_b32 v19, s38')
    su('s_lshr_b32 s40, s20, 1')
    su('s_and_b32 s41, s20, 1')
    su('s_mul_i32 s42, s40, 12')
    su('v_add_u32 v10, s42, v2')
    su('v_and_b32 v10, 31, v10')
    su('v_cmp_gt_u32 s[50:51], 20, v10')
    su('s_lshl_b32 s42, s40, 2')
    su('v_cmp_le_u32 vcc, 16, v10\nv_mov_b32 v9, s42\nv_cndmask_b32 v9, 0, v9, vcc')
    su('v_add_lshl_u32 v10, v10, v9, 2')
    su('v_mul_u32_u24 v9, 384, v3')
    su('v_add_u32 v10, v10, v9')
    su('v_lshl_add_u32 v5, v3, 3, v4')
    su('v_cmp_eq_u32 s[52:53], s40, v3')
    su('s_and_b64 s[52:53], s[52:53], s[50:51]')
    su('s_cmp_eq_u32 s41, 0\ns_cselect_b64 s[52:53], s[52:53], s[50:51]')
    su('s_cmp_eq_u32 s40, 0\ns_cselect_b64 s[54:55], s[50:51], s[52:53]\ns_cselect_b64 s[56:57], s[52:53], s[50:51]')
    row0 = lambda rho: 8 * (rho // 4) + rho % 4
    srow = [[(row0(i) if i < 4 else row0(i) - 3) for i in range(0, 6)], [row0(i) - 3 for i in range(6, 12)],
            [row0(i) - 11 + 21 for i in range(4, 10)], [row0(i) - 11 + 21 for i in range(10, 16)]]
    su('s_mul_i32 s45, s22, 4032')
    su(f's_add_u32 s45, s45, {KVS}')
    if 'rep' in X:
        su('s_mul_i32 s45, s22, 4032')
        su('s_lshl_b32 s46, s21, 16')
        su('s_add_u32 s45, s45, s46')
        su(f's_add_u32 s45, s45, {M.STAMP}')
    su('s_lshl_b32 s46, s20, 3')
    for i in range(6):
        lit = sum((srow[w][i] & 0xff) << (8 * w) for w in range(4))
        su(f's_lshr_b32 s{60 + i}, {lit}, s46')
        su(f's_and_b32 s{60 + i}, s{60 + i}, 0xff')
        su(f's_mul_i32 s{60 + i}, s{60 + i}, 96')
        su(f's_add_u32 s{60 + i}, s{60 + i}, s45')
    h_q(3)
    h_bar(lambda t: t[0] == 'Q' and t[1] < 3)
    for i in range(4, 7):
        h_q(i)
    for x in su.l[:len(su.l) // 2]:
        k(x)
    h_q(7)
    h_bar(lambda t: t[0] == 'Q' and t[1] < 6)
    for i in range(8, 10):
        h_q(i)
    for x in su.l[len(su.l) // 2:]:
        k(x)
    for i in range(4):
        h_p(i)
    h_bar(lambda t: t[0] == 'Q')
    k('s_sleep 8')
    for i in range(4, 10):
        h_p(i)
    h_bar(lambda t: t[0] == 'P' and t[1] < 4)
    stamp(k, 2)
    k('s_waitcnt vmcnt(0)')
    count(76)
    if ROWMAP:
        k('s_lshr_b32 s70, s2, 3')
        k('s_mul_i32 s70, s70, 25600')
        k(f's_add_u32 s69, s70, {M.WOT if is6 else M.WOF}')
        k('v_and_b32 v23, 255, v0')
        k('v_min_u32 v23, 199, v23')
        k('v_lshlrev_b32 v23, 7, v23')
        k(f'buffer_load_dword v23, v23, {WS}, s69 offen')

    def h_read(t):
        for q in range(4):
            k(f'ds_read_b128 {vr(HA + 16 * t + 4 * q, 4)}, v6 offset:{4096 * t + 1024 * q}')

    spin('v19', 16, 1)
    stamp(k, 3)
    for g in range(4):
        k(f'ds_read_b128 {vr(RR + 4 * g, 4)}, v17 offset:{32 * g}')
        k(f'ds_read_b128 {vr(HA + 4 * g, 4)}, v6 offset:{1024 * g}')
    for st in range(2):
        a = HA + 16 * st
        hi, lo = ('v13', 'v15') if st else ('0', 'v14')
        for r in range(16):
            if st == 0 and r == 8:
                spin('v19', 16, NA)
                for t in range(1, NA):
                    h_read(t)
                for g in range(4):
                    k(f'ds_read_b128 {vr(RS2 + 4 * g, 4)}, v18 offset:{128 + 32 * g}')
            k(f'v_mul_f32 v{TM + r}, v{a + r}, v{RR + r}')
            k(f'v_min_f32 v{TE + r}, {hi}, v{TM + r}')
            k(f'v_exp_f32 v{TE + r}, v{TE + r}')
            k(f'v_max_f32 v{TM + r}, {lo}, v{TM + r}')
            if r >= 1:
                k(f'v_fma_f32 v{TM + r - 1}, v{TM + r - 1}, s39, v{TE + r - 1}')
            if r >= 2 and r % 2 == 0:
                k(f'v_cvt_pk_bf16_f32 v{PP + 8 * st + r // 2 - 1}, v{TM + r - 2}, v{TM + r - 1}')
        k(f'v_fma_f32 v{TM + 15}, v{TM + 15}, s39, v{TE + 15}')
        k(f'v_cvt_pk_bf16_f32 v{PP + 8 * st + 7}, v{TM + 14}, v{TM + 15}')
    P0, P1, P2 = PP, PP + 8, PP + 16
    for q in range(8):
        k(f'v_cndmask_b32 v{TE + q}, v{P0 + q}, v{P1 + q}, s[30:31]')
    stamp(k, 4)
    spin('v19', 16, 3)
    if 'p2' not in X:
        k('s_setprio 1')
    for q in range(4):
        k(f'ds_read_b128 {vr(HA + 32 + 4 * q, 4)}, v16 offset:{1024 * q}')
    a = HA + 32
    for q in range(8):
        k(f'v_mul_f32 v{TM + 2 * q}, v{a + 2 * q}, v{RS2 + 2 * q}')
        k(f'v_mul_f32 v{TM + 2 * q + 1}, v{a + 2 * q + 1}, v{RS2 + 2 * q + 1}')
        k(f'v_cvt_pk_bf16_f32 v{MA + q}, v{TM + 2 * q}, v{TM + 2 * q + 1}')
        k(f'v_cndmask_b32 v{P2 + q}, v{MA + q}, v11, s[34:35]')
        k(f'v_cndmask_b32 v{MB + q}, v{P1 + q}, v{P2 + q}, s[30:31]')
        if q % 4 == 3:
            s = q // 4
            d = vr(DKV + 16, 16)
            if 'p2' in X:
                k('s_setprio 1')
            k(f'{mf} {d}, {vr(P2 + 4 * s, 4)}, {vr(TE + 4 * s, 4)}, {d if s else 0}')
            d = vr(DKV, 16)
            k(f'{mf} {d}, {vr(MB + 4 * s, 4)}, {vr(P0 + 4 * s, 4)}, {d if s else 0}')
            if 'p2' in X:
                k('s_setprio 0')
    for q in range(8):
        k(f'v_cndmask_b32 v{MA + q}, v{P1 + q}, v{MA + q}, s[32:33]')
    for hh in (1, 0):
        for pr in range(6):
            k(f'ds_write_b64 v7, {vr(DKV + 16 * hh + 4 * hh + 2 * pr, 2)} offset:{512 * (6 * hh + pr)}')
    count(36)
    if 'p2' not in X:
        for s in range(2):
            d = vr(DT, 16)
            k(f'{mf} {d}, {vr(MA + 4 * s, 4)}, {vr(ID + 4 * s, 4)}, {d if s else 0}')
    spin('v20', 36, 4)
    stamp(k, 5)
    RD = HA
    for wv in range(4):
        for i in range(3):
            k(f'ds_read_b64 {vr(RD + 6 * wv + 2 * i, 2)}, v12 offset:{8192 * wv + 512 * i}')
    for i in range(6):
        k(f'v_add_f32 v{RD + i}, v{RD + i}, v{RD + 6 + i}')
        k(f'v_add_f32 v{RD + 12 + i}, v{RD + 12 + i}, v{RD + 18 + i}')
    masks = ['s[54:55]', 's[52:53]', 's[52:53]', 's[56:57]', 's[50:51]', 's[50:51]']
    for i in range(6):
        k(f'v_add_f32 v{RD + i}, v{RD + i}, v{RD + 12 + i}')
    for i in range(6):
        k(f's_mov_b64 exec, {masks[i]}')
        if 'noat' in X:
            continue
        k(f'buffer_store_dword v{RD + i}, v10, {WS}, s{60 + i} offen' if 'st' in X else f'buffer_atomic_add_f32 v{RD + i}, v10, {WS}, s{60 + i} offen')
    k('s_mov_b64 exec, -1')
    if 'p2' in X:
        k('s_setprio 1')
        for s in range(2):
            d = vr(DT, 16)
            k(f'{mf} {d}, {vr(MA + 4 * s, 4)}, {vr(ID + 4 * s, 4)}, {d if s else 0}')
        k('s_setprio 0')
    k(f's_add_u32 s44, s43, {PQ + 4 * 2048}')
    k(f'v_cvt_pk_bf16_f32 v{ST}, v{DT + 12}, v{DT + 13}')
    k(f'v_cvt_pk_bf16_f32 v{ST + 1}, v{DT + 14}, v{DT + 15}')
    k(f'buffer_store_dwordx2 {vr(ST, 2)}, v5, {WS}, s44 offen')
    if is6:
        k('v_cmp_eq_u32 vcc, 0, v3')
        for x in range(2):
            k(f'v_cvt_pk_bf16_f32 v{ST + 2 + x}, v{DT + 2 * x}, v{DT + 2 * x + 1}')
            k(f'v_cvt_pk_bf16_f32 v{ST + 4 + x}, v{DT + 4 + 2 * x}, v{DT + 5 + 2 * x}')
            k(f'v_cndmask_b32 v{ST + 2 + x}, v{ST + 2 + x}, v{ST + 4 + x}, vcc')
        k(f's_add_u32 s44, s43, {M.X3 + 4 * 2048}')
        k(f'buffer_store_dwordx2 {vr(ST + 2, 2)}, v5, {WS}, s44 offen')
    stamp(k, 6)
    endk(k, 2)
    k(f'{nm}_exit:')
    k('s_endpgm')
    return k
```

```python
from gen import *
import os
X = set(os.environ.get('XK4', '').split(','))

KVI = 102400
RED = KVI
K4_LDS = KVI + 32768
K4_BLOCK = 640


HALFKV = os.environ.get('HALFKV', '0') == '1'


def gen_k4():
    k = Kern()
    mf = 'v_mfma_f32_16x16x32_bf16'
    for nm, kidx in (('k4', 3), ('k7', 6)):
        k(f'{nm}_kernel:')
        stamp_start(k, kidx)
        k('s_cmp_ge_u32 s2, 256')
        k('s_cbranch_scc1 k4_exit')
        srd_from_arg(k, 4, 64, M.WS_USED)
        if nm == 'k4':
            srd_from_arg(k, 8, 64, M.WS_USED)
            k(f's_mov_b32 s40, {M.PQ1}')
            k(f's_mov_b32 s41, {M.KVS1}')
            k(f's_mov_b32 s42, {M.WOF}')
            k(f's_mov_b32 s43, {M.XH1}')
            k(f's_mov_b32 s44, {M.XH2}')
            k('s_mov_b32 s45, 2048')
            k('s_mov_b32 s46, 16')
            k(f's_mov_b32 s47, {M.TS}')
            k('s_branch k4_main')
        else:
            srd_from_arg(k, 8, 48, 2048 * 1280)
            k(f's_mov_b32 s40, {M.PQ2}')
            k(f's_mov_b32 s41, {M.KVS2}')
            k(f's_mov_b32 s42, {M.WOT}')
            k(f's_mov_b32 s43, {M.X3}')
            k('s_mov_b32 s44, 0')
            k('s_mov_b32 s45, 16')
            k('s_mov_b32 s46, 1280')
            k(f's_mov_b32 s47, {128 * 1280}')
    k('k4_main:')
    k('v_lshlrev_b32 v5, 4, v0')
    k('v_and_b32 v1, 63, v0')
    k('v_lshrrev_b32 v2, 6, v0')
    k('v_readfirstlane_b32 s19, v2')
    k('v_and_b32 v2, 15, v0')
    k('v_bfe_u32 v3, v0, 4, 2')
    k('s_and_b32 s20, s19, 3')
    k('s_lshr_b32 s19, s19, 2')
    if os.environ.get('ROWMAP', '0') == '1':
        k('s_and_b32 s21, s2, 7')
        k('s_lshl_b32 s21, s21, 1')
        k('s_lshr_b32 s22, s2, 7')
        k('s_add_u32 s21, s21, s22')
        k('s_bfe_u32 s24, s2, 0x10006')
        k('s_bfe_u32 s22, s2, 0x30003')
    else:
        k('s_bfe_u32 s21, s2, 0x20001')
        k('s_lshl_b32 s21, s21, 2')
        k('s_lshr_b32 s22, s2, 6')
        k('s_add_u32 s21, s21, s22')
        k('s_bfe_u32 s24, s2, 0x10005')
        k('s_and_b32 s22, s2, 1')
        k('s_lshl_b32 s22, s22, 2')
        k('s_bfe_u32 s23, s2, 0x20003')
        k('s_add_u32 s22, s22, s23')
    k('v_lshlrev_b32 v6, 4, v1')
    k('s_cmp_eq_u32 s19, 2')
    k('s_cbranch_scc1 k4_ld')
    k('s_lshl_b32 s24, s24, 6')
    k('s_lshl_b32 s23, s20, 4')
    k('s_add_u32 s24, s24, s23')
    k('v_add_u32 v4, s24, v2')
    k(f's_mul_i32 s23, s21, {M.TS}')
    k('s_add_u32 s40, s40, s23')
    k(f's_mul_i32 s26, s19, {40 * 2048}')
    k('s_add_u32 s40, s40, s26')
    k('v_lshlrev_b32 v7, 11, v3')
    k('v_lshl_add_u32 v8, v4, 4, v7')
    k('v_add_u32 v10, 4096, v8')
    k('v_cmp_eq_u32 vcc, 2, v3')
    k('v_cndmask_b32 v9, v8, v10, vcc')
    k('v_cmp_eq_u32 vcc, 3, v3')
    k('v_mov_b32 v11, 0x40000000')
    k('v_cndmask_b32 v9, v9, v11, vcc')
    k('v_cndmask_b32 v10, v10, v11, vcc')
    k('s_mul_i32 s26, s19, 51200')
    KS, DD, PO, ACC, RS, RF = 24, 24, 72, 24, 44, 52
    KF, WF = 32, 0
    issued = []
    PASS = [0, 4, 1, 5, 2, 6, 3, 7] if HALFKV else list(range(8))
    KSR = lambda i: (KS + 4 * i if (i < 4 or not HALFKV) else 92 + 4 * (i - 4))
    if HALFKV:
        ops = [('kv', i) for i in range(4)] + [('pq', 0), ('pq', 1)] + [('kv', i) for i in range(4, 8)] + [('pq', i) for i in range(2, 16)]
    else:
        ops = [('kv', i) for i in range(8)] + [('pq', i) for i in range(16)]
    state = {'mf': -1}

    def issue(n=1):
        for _ in range(n):
            if not ops:
                return
            if ops[0][0] == 'pq' and ops[0][1] - 8 > state['mf']:
                return
            op = ops.pop(0)
            kind, i = op
            if 'nopq' in X and kind == 'pq' and i >= 2:
                continue
            if kind == 'kv':
                if HALFKV:
                    k(f's_add_u32 s48, s41, {8064 * PASS[i]}')
                    k(f'buffer_load_dwordx4 {vr(KSR(i), 4)}, v5, {WS}, s48 offen')
                else:
                    k(f'buffer_load_dwordx4 {vr(KS + 4 * i, 4)}, v5, {WS}, s41 offen')
                    k('s_add_u32 s41, s41, 8064')
            elif kind == 'pq':
                k(f'buffer_load_dwordx4 {ar(4 * (i % 8), 4)}, {"v9" if i % 2 == 0 else "v10"}, {WS}, s40 offen')
                if i % 2:
                    k(f's_add_u32 s40, s40, {5 * 2048}')
            elif kind == 'res':
                if i == 0:
                    k(f'buffer_load_dwordx4 {vr(RS, 4)}, v8, {WS}, s35 offen')
                else:
                    k(f'buffer_load_dwordx2 {vr(RS + 4, 2)}, v15, {WS}, s43 offen')
            issued.append(op)

    issue(8 if HALFKV else 10)
    stamp(k, 1)
    k('v_mul_u32_u24 v11, 521, v0')
    k('v_lshrrev_b32 v11, 16, v11')
    k('v_mul_u32_u24 v12, 126, v11')
    k('v_sub_u32 v12, v0, v12')
    k('v_mul_u32_u24 v13, 43, v12')
    k('v_lshrrev_b32 v13, 8, v13')
    k('v_mul_u32_u24 v14, 6, v13')
    k('v_sub_u32 v12, v12, v14')
    k('v_and_b32 v14, 1, v11')
    k('v_lshl_add_u32 v14, v14, 5, v13')
    k('v_add_u32 v16, 1, v13')
    k('v_cmp_gt_u32 vcc, 4, v14')
    k('v_cndmask_b32 v13, v13, v16, vcc')
    k('v_cmp_eq_u32 vcc, 4, v14')
    k('v_cndmask_b32 v13, v13, 0, vcc')
    k('v_mul_u32_u24 v14, 52, v13')
    k('v_lshrrev_b32 v14, 8, v14')
    k('v_mul_u32_u24 v16, 5, v14')
    k('v_cmp_eq_u32 vcc, v16, v13')
    k('v_sub_u32 v13, v13, v14')
    k('v_subrev_u32 v13, 1, v13')
    k('v_lshrrev_b32 v16, 1, v12')
    k('v_lshl_add_u32 v13, v16, 4, v13')
    k('v_mad_u32_u24 v14, v16, 5, v14')
    k('v_add_u32 v14, 48, v14')
    k('v_cndmask_b32 v13, v13, v14, vcc')
    k('v_and_b32 v12, 1, v12')
    k('v_lshlrev_b32 v12, 3, v12')
    k('v_lshl_add_u32 v12, v13, 4, v12')
    k('v_lshl_add_u32 v11, v11, 10, v12')
    k(f'v_add_u32 v11, {KVI}, v11')
    k('v_cmp_gt_u32 vcc, 504, v0')
    k('s_mov_b64 s[38:39], vcc')

    def conv(rng):
        k('s_mov_b64 exec, s[38:39]')
        for i in rng:
            b = KSR(i)
            k(f'v_cvt_pk_bf16_f32 v{b}, v{b}, v{b + 1}')
            k(f'v_cvt_pk_bf16_f32 v{b + 1}, v{b + 2}, v{b + 3}')
            k(f'ds_write_b64 v11, {vr(b, 2)} offset:{4096 * PASS[i]}')
        k('s_mov_b64 exec, -1')
    conv(range(4) if HALFKV else range(8))
    issue(2)
    k('v_min_u32 v13, 2, v3')
    k(f's_lshl_b32 s28, s19, 14')
    k(f's_add_u32 s28, s28, {KVI}')
    k('v_lshl_add_u32 v12, v13, 4, v2')
    k('v_lshl_add_u32 v16, v12, 4, s28')
    k('v_lshrrev_b32 v12, 2, v2')
    k('v_add_u32 v12, 1, v12')
    k('v_and_b32 v14, 3, v2')
    k('v_cmp_eq_u32 vcc, 0, v14')
    k('v_cndmask_b32 v12, 0, v12, vcc')
    k('v_mad_u32_u24 v12, v13, 5, v12')
    k('v_lshl_add_u32 v17, v12, 4, s28')
    k('v_mov_b32 v108, 0')
    k(f'v_mov_b32 v109, {fhex(1e-6)}')
    k('v_mov_b32 v110, 0')
    k('v_mov_b32 v111, 0')
    k('s_waitcnt lgkmcnt(0)')
    k('s_barrier')
    stamp(k, 2)
    su = []
    kk = k
    k = lambda t: su.append(t)
    k('v_add_u32 v21, s26, v6')
    k('s_lshl_b32 s28, s19, 11')
    k('v_add_u32 v14, s28, v21')
    k('v_subrev_u32 v22, s28, v21')
    k('v_lshrrev_b32 v18, 1, v3')
    k('v_lshlrev_b32 v15, 11, v18')
    k('v_and_b32 v7, 1, v3')
    k('v_lshl_add_u32 v15, v7, 3, v15')
    k('v_lshl_add_u32 v15, v4, 4, v15')
    k('s_mul_i32 s28, s22, 20480')
    k('s_add_u32 s43, s43, s28')
    k('s_add_u32 s43, s43, s23')
    k('s_lshl_b32 s28, s19, 13')
    k('s_add_u32 s35, s43, s28')
    k('s_add_u32 s43, s43, 16384')
    k(f's_mov_b32 s29, {fhex(1e-6)}')
    k('v_mul_lo_u32 v19, v3, s45')
    k('v_mul_lo_u32 v20, v4, s46')
    k('v_add_u32 v19, v19, v20')
    k('v_mul_lo_u32 v18, v18, s45')
    k('v_lshl_add_u32 v18, v7, 3, v18')
    k('v_add_u32 v20, v18, v20')
    k('s_mul_i32 s30, s22, 10')
    k('s_mul_i32 s30, s30, s45')
    k('s_add_u32 s30, s30, s44')
    k('s_mul_i32 s31, s21, s47')
    k('s_add_u32 s30, s30, s31')
    k('s_lshl_b32 s31, s45, 3')
    k('s_add_u32 s33, s30, s31')
    k('s_lshl_b32 s31, s45, 2')
    k('s_mul_i32 s31, s31, s19')
    k('s_add_u32 s30, s30, s31')
    k('s_lshl_b32 s28, s19, 2')
    k('s_add_u32 s28, s28, s20')
    k('s_mul_i32 s34, s28, 3072')
    k(f's_add_u32 s34, s34, {RED}')
    k('v_add_u32 v18, s34, v6')
    k('s_xor_b32 s28, s28, 4')
    k('s_mul_i32 s34, s28, 3072')
    k(f's_add_u32 s34, s34, {RED}')
    k('v_add_u32 v23, s34, v6')
    k = kk

    def rd_kv(h):
        if 'linkv' in X:
            k(f'ds_read_b128 {ar(KF + 8 * (h % 3), 4)}, v6 offset:{1024 * h}')
            k(f'ds_read_b128 {ar(KF + 8 * (h % 3) + 4, 4)}, v6 offset:{1024 * h + 32768}')
            return
        k(f'ds_read_b128 {ar(KF + 8 * (h % 3), 4)}, v16 offset:{1024 * h}')
        k(f'ds_read_b128 {ar(KF + 8 * (h % 3) + 4, 4)}, v17 offset:{1024 * h + 768}')

    def rd_wo(n):
        ks, t = divmod(n, 5)
        base = 'v14' if t < 2 else ('v22' if t < 4 else 'v21')
        k(f'ds_read_b128 {ar(WF + 4 * (n % 12), 4)}, {base} offset:{ks * 5120 + t * 1024}')

    dreg = lambda h: DD + 8 * (h % 6)

    def fin(h):
        if 'nofin' in X:
            return
        d = dreg(h)
        k(f'v_rcp_f32 v{d + 6}, v{d + 5}')

    def fin2(h):
        if 'nofin' in X:
            return
        d = dreg(h)
        for x in range(5):
            k(f'v_mul_f32 v{d + x}, v{d + x}, v{d + 6}')
        p = PO + 5 * (h // 2)
        if h % 2 == 0:
            k(f'v_cvt_pk_bf16_f32 v{p}, v{d}, v{d + 1}')
            k(f'v_cvt_pk_bf16_f32 v{p + 1}, v{d + 2}, v{d + 3}')
        else:
            k(f'v_cvt_pk_bf16_f32 v{p + 2}, v{dreg(h - 1) + 4}, v{d}')
            k(f'v_cvt_pk_bf16_f32 v{p + 3}, v{d + 1}, v{d + 2}')
            k(f'v_cvt_pk_bf16_f32 v{p + 4}, v{d + 3}, v{d + 4}')

    for h in range(2):
        rd_kv(h)
    issue(3)
    for h in range(16):
        if HALFKV and h == 3:
            conv(range(4, 8))
        if HALFKV and h == 6:
            k('s_waitcnt lgkmcnt(0)')
            k('s_barrier')
        if h + 2 < 16:
            rd_kv(h + 2)
        for t in range(2):
            k(f'{mf} {vr(dreg(h) + 4 * t, 4)}, {ar(KF + 8 * (h % 3) + 4 * t, 4)}, {ar(4 * (h % 8), 4)}, {"v[108:111]" if t else 0}')
        state['mf'] = h
        if 'fine' in X and h in (0, 4, 8, 12):
            stamp(k, 3 + h // 4)
        issue(1)
        for _ in range(3):
            if su:
                k(su.pop(0))
        if h >= 2:
            fin(h - 2)
        if h >= 3:
            fin2(h - 3)
    assert not ops and not su, su
    fin(14)
    fin2(13)
    fin(15)
    fin2(14)
    fin2(15)
    if 'fine' not in X:
        stamp(k, 3)
    ops += [('res', 0), ('res', 1)]
    issue(2)
    k('s_barrier')
    if 'fine' not in X:
        stamp(k, 4)
    AH = 8
    for n in range(AH):
        rd_wo(n)
    for n in range(50):
        ks, t = divmod(n, 5)
        nn = n + AH
        if nn < 50:
            if nn in (15, 30, 40):
                k('s_barrier')
            rd_wo(nn)
        d = vr(ACC + 4 * t, 4)
        k(f'{mf} {d}, {ar(WF + 4 * (n % 12), 4)}, {vr(PO + 4 * ks, 4)}, {d if ks else 0}')
        if 42 <= n < 48:
            x = n - 42
            k(f'v_lshlrev_b32 v{RF + 2 * x}, 16, v{RS + x}')
            k(f'v_and_b32 v{RF + 2 * x + 1}, 0xffff0000, v{RS + x}')
    if 'fine' not in X:
        stamp(k, 5)
    for t in range(3):
        k(f'ds_write_b128 v18, {vr(ACC + 8 + 4 * t, 4)} offset:{1024 * t}')
    for x in range(8):
        k(f'v_add_f32 v{ACC + x}, v{ACC + x}, v{RF + x}')
    for x in range(4):
        k(f'v_add_f32 v{ACC + 8 + x}, v{ACC + 16 + x}, v{RF + 8 + x}')
    k('s_waitcnt lgkmcnt(0)')
    k('s_barrier')
    for t in range(3):
        k(f'ds_read_b128 {vr(RF + 4 * t, 4)}, v23 offset:{1024 * t}')
    for x in range(6):
        k(f'v_pk_add_f32 {vr(ACC + 2 * x, 2)}, {vr(ACC + 2 * x, 2)}, {vr(RF + 2 * x, 2)}')
        k(f'v_cvt_pk_bf16_f32 v{PO + x}, v{ACC + 2 * x}, v{ACC + 2 * x + 1}')
        if x == 3:
            k(f'buffer_store_dwordx4 {vr(PO, 4)}, v19, {AUX}, s30 offen')
    k('s_cmp_eq_u32 s19, 0')
    k('s_cbranch_scc1 k4_st3')
    for x in range(4):
        k(f'v_mov_b32 v{ACC + 8 + x}, 0')
    k('s_branch k4_ssq')
    k('k4_st3:')
    k(f'buffer_store_dwordx2 {vr(PO + 4, 2)}, v20, {AUX}, s33 offen')
    k('k4_ssq: ; nojoinwait')
    k('s_cmp_eq_u32 s46, 16')
    k('s_cbranch_scc0 k4_done')
    k('s_add_u32 s34, s22, s19')
    k('s_cmp_eq_u32 s34, 0')
    k('s_cselect_b32 s34, 16, 0')
    k('v_cmp_gt_u32 vcc, s34, v1')
    k('v_mov_b32 v12, 0')
    k(f'v_cndmask_b32 v{ACC + 1}, v{ACC + 1}, v12, vcc')
    k(f'v_pk_mul_f32 v[12:13], {vr(ACC, 2)}, {vr(ACC, 2)}')
    k(f'v_pk_mul_f32 v[14:15], {vr(ACC + 2, 2)}, {vr(ACC + 2, 2)}')
    for x in range(2, 6):
        t = 'v[12:13]' if x % 2 == 0 else 'v[14:15]'
        k(f'v_pk_fma_f32 {t}, {vr(ACC + 2 * x, 2)}, {vr(ACC + 2 * x, 2)}, {t}')
    k('v_pk_add_f32 v[12:13], v[12:13], v[14:15]')
    k('v_add_f32 v12, v12, v13')
    k('v_mov_b32 v13, v12')
    k('v_permlane16_swap_b32 v12, v13')
    k('v_add_f32 v12, v12, v13')
    k('v_mov_b32 v13, v12')
    k('v_permlane32_swap_b32 v12, v13')
    k('v_add_f32 v12, v12, v13')
    k('v_lshlrev_b32 v13, 2, v4')
    k('s_lshl_b32 s34, s21, 9')
    k(f's_add_u32 s34, s34, {M.SSQ2}')
    k('s_mov_b64 exec, 0xffff')
    k(f'buffer_atomic_add_f32 v12, v13, {WS}, s34 offen')
    k('s_mov_b64 exec, -1')
    endk(k, 3)
    k('k4_done:')
    endk(k, 3)
    k('k4_ld:')
    k('s_mul_i32 s25, s22, 102400')
    k('s_add_u32 s25, s25, s42')
    k('s_mul_i32 s27, s20, 51200')
    k('s_add_u32 s25, s25, s27')
    if 'touch' in X:
        k('s_lshr_b32 s30, s2, 3')
        k('s_lshl_b32 s31, s30, 1')
        k('s_add_u32 s31, s31, s20')
        k('s_lshl_b32 s31, s31, 10')
        k('s_add_u32 s31, s31, s41')
        k('v_lshrrev_b32 v7, 3, v1')
        k('v_and_b32 v8, 7, v1')
        k('v_lshlrev_b32 v8, 7, v8')
        k('v_lshl_add_u32 v9, v7, 28, v8')
        k(f'buffer_load_dword v12, v9, {WS}, s31 offen')
        k(f's_mul_i32 s31, s21, {M.TS}')
        k('s_add_u32 s31, s31, s40')
        k('s_lshl_b32 s32, s24, 10')
        k('s_add_u32 s31, s31, s32')
        k('s_mul_i32 s32, s20, 40')
        k('s_add_u32 s32, s32, s23')
        k('s_lshl_b32 s32, s32, 11')
        k('s_add_u32 s31, s31, s32')
        k('v_lshl_add_u32 v9, v7, 13, v8')
        k(f'buffer_load_dword v13, v9, {WS}, s31 offen')
        k('s_add_u32 s31, s31, 65536')
        k('v_lshrrev_b32 v10, 4, v1')
        k('v_lshl_add_u32 v9, v10, 28, v9')
        k(f'buffer_load_dword v14, v9, {WS}, s31 offen')
        k('s_lshr_b32 s31, s30, 2')
        k('s_lshl_b32 s31, s31, 7')
        k('s_add_u32 s31, s31, s25')
        k('v_min_u32 v9, 49, v1')
        k('v_lshlrev_b32 v9, 10, v9')
        k(f'buffer_load_dword v15, v9, {WS}, s31 offen')
    k(f's_sleep {int(os.environ.get("LDSLEEP", "4"))}')
    NPRE = int(os.environ.get("LDPRE", "6"))
    THR = int(os.environ.get("LDTHR", "8"))
    NB2 = int(os.environ.get("LDB2", "34"))
    for i in range(50):
        if i % 4 == 0:
            k(f's_add_u32 m0, s27, {1024 * i}')
        if i >= THR and i < NB2:
            k(f's_waitcnt vmcnt({THR - 1})')
        k(f'buffer_load_dwordx4 v6, {WS}, s25 offen offset:{1024 * (i % 4)} lds')
        if i % 4 == 3:
            k('s_add_u32 s25, s25, 4096')
        if i == NPRE - 1:
            k('s_barrier')
        if HALFKV and i == NPRE + 3:
            k('s_barrier')
        if i == NB2 - 1:
            k(f's_waitcnt vmcnt({NB2 - 15})')
            k('s_barrier')
        if i == 41:
            k('s_waitcnt vmcnt(12)')
            k('s_barrier')
    k('s_waitcnt vmcnt(10)')
    k('s_barrier')
    k('s_waitcnt vmcnt(0)')
    k('s_barrier')
    k('k4_exit: ; nojoinwait2')
    k('s_endpgm')
    return k
```

```python
import numpy as np
S, D, H, Dh = 2048, 640, 32, 20
def bf2f(u): return (np.asarray(u).astype(np.uint32) << 16).view(np.float32)
def f2bf(x):
    x = np.ascontiguousarray(x, dtype=np.float32); u = x.view(np.uint32)
    return ((u + 0x7FFF + ((u >> 16) & 1)) >> 16).astype(np.uint16)
def rb(x): return bf2f(f2bf(x))

TS = 80 * 2048 + 2048
XH_BYTES = 16 * TS
WT_BYTES = 320 * 8192
off = 0
def _alloc(n):
    global off
    o = off; off += (n + 4095) // 4096 * 4096; return o
import os
if os.environ.get('ALIAS'):
    XH0 = _alloc(XH_BYTES); XH1 = XH0; XH2 = XH0; XH3 = XH0
    X3 = _alloc(XH_BYTES); PQ1 = _alloc(XH_BYTES); PQ2 = PQ1
else:
    XH0 = _alloc(XH_BYTES); XH1 = _alloc(XH_BYTES); XH2 = _alloc(XH_BYTES); XH3 = _alloc(XH_BYTES)
    X3 = _alloc(XH_BYTES); PQ1 = _alloc(XH_BYTES); PQ2 = _alloc(XH_BYTES)
WT = _alloc(WT_BYTES)
WQ = _alloc(16 * 40 * 5 * 1024)
WOF = _alloc(8 * 100 * 1024); WOT = _alloc(8 * 100 * 1024)
SSQ0 = _alloc(8192)
ZERO_START = off
SSQ2 = _alloc(8192)
KVS_BYTES = 32 * 21 * 96
KVS1 = _alloc(KVS_BYTES + 1024); KVS2 = _alloc(KVS_BYTES + 1024)
ZERO_END = off
STAMP = _alloc(8 * 262144)
WS_USED = off

def freq(cs):
    b, m = divmod(cs, 16)
    if b >= 1: return b + 40 * m if m < 8 else 40 - b + 40 * (m - 8)
    if m == 0: return 320
    return 40 * m if m < 8 else 20 + 40 * (m - 8)
FREQ = np.array([freq(c) for c in range(320)])
assert sorted(FREQ) == list(range(1, 321))
def Fmat():
    d = np.arange(D)[:, None]; F = np.zeros((D, D))
    c = FREQ[None, :]
    F[:, 0::2] = np.sqrt(2 / D) * np.cos(2 * np.pi * d * c / D)
    F[:, 1::2] = -np.sqrt(2 / D) * np.sin(2 * np.pi * d * c / D)
    F[:, 0] = ((-1.0) ** np.arange(D)) / np.sqrt(D)
    F[:, 1] = 1 / np.sqrt(D)
    return F
def T1mat():
    n1 = np.arange(40); T1 = np.zeros((20, 2, 40)); s1 = 1 / np.sqrt(40)
    T1[0, 0] = s1; T1[0, 1] = s1 * (-1.0) ** n1
    for b in range(1, 20):
        T1[b, 0] = np.sqrt(2) * s1 * np.cos(2 * np.pi * b * n1 / 40); T1[b, 1] = -np.sqrt(2) * s1 * np.sin(2 * np.pi * b * n1 / 40)
    return T1
def T2mat():
    T1 = T1mat(); M1 = np.zeros((D, 20, 2, 16))
    for n2 in range(16): M1[n2::16, :, :, n2] = T1.transpose(2, 0, 1)
    T2 = M1.reshape(D, D).T @ Fmat()
    T2[np.abs(T2) < 1e-9] = 0
    T2 = T2.reshape(20, 2, 16, 20, 32)
    for b in range(20):
        for b2 in range(20):
            if b != b2: assert np.all(T2[b, :, :, b2] == 0), (b, b2)
    return np.stack([T2[b, :, :, b] for b in range(20)])
def n1_of(g, i): return 16 * (i // 4) + 4 * g + i % 4 if i < 8 else 32 + 2 * g + (i - 8)
def T1table():
    T1 = T1mat(); tab = np.zeros((3, 2, 64, 8), np.float32)
    for t in range(3):
        for l in range(64):
            i, g = l % 16, l // 16
            sig = 4 * t + i % 4; gp = i // 4
            if sig >= 10: continue
            b, ri = 5 * gp + sig // 2, sig % 2
            for e in range(8): tab[t, 0, l, e] = T1[b, ri, n1_of(g, e)]
            for e in range(2): tab[t, 1, l, e] = T1[b, ri, n1_of(g, 8 + e)]
    return f2bf(tab)
def T2table():
    T2 = T2mat(); tab = np.zeros((20, 2, 64, 8), np.float32)
    for b in range(20):
        for t in range(2):
            for l in range(64):
                i, g = l % 16, l // 16
                kl = 8 * (i // 4) + 4 * t + i % 4
                for ri in range(2):
                    for q in range(4): tab[b, t, l, 4 * ri + q] = T2[b, ri, 4 * g + q, kl]
    return f2bf(tab)
def fft640(x):
    V = x.shape[0]
    xm = x.reshape(V, 40, 16).astype(np.float32)
    U = rb(np.einsum('brn,vnm->vbrm', rb(T1mat()), xm))
    return np.einsum('vbrm,brmk->vbk', U, rb(T2mat())).reshape(V, D).astype(np.float32)

def from_gran(u):
    t = u.reshape(16, TS // 2)[:, :80 * 1024].reshape(16, 80, 128, 8)
    return bf2f(t.transpose(0, 2, 1, 3).reshape(2048, 640))

def wq_col(nt, st, cl):
    h0, h1 = 2 * nt, 2 * nt + 1
    Q, K, V = 0, 640, 1280
    if st >= 3:
        hf = (cl // 4) % 2; rho = 4 * (cl // 8) + cl % 4
        gi = 2 * (rho // 8) + hf
        if st == 4: return ('i', 40 * nt + 8 * gi + rho % 8)
        return ('w', Q + 20 * (h0 + gi // 2) + 8 * hf + rho % 8)
    if st == 0:
        return ('w', K + 20 * h0 + cl) if cl < 20 else ('w', K + 20 * h1 + cl - 20)
    if st == 1:
        if cl < 8: return ('w', K + 20 * h1 + 12 + cl)
        if cl < 24: return ('w', V + 20 * h0 + 4 + cl - 8)
        if cl < 28: return ('w', Q + 20 * h0 + 16 + cl - 24)
        return ('w', Q + 20 * h1 + 16 + cl - 28)
    if cl < 4: return ('w', V + 20 * h0 + cl)
    if cl < 12: return ('i', 40 * nt + 32 + (cl - 8 if cl >= 8 else cl))
    return ('w', V + 20 * h1 + cl - 12)
WQ_POS_W = np.zeros(1920, np.int64); WQ_POS_I = np.zeros(640, np.int64)
for nt in range(16):
    for st in range(5):
        for cl in range(32):
            k, n = wq_col(nt, st, cl)
            (WQ_POS_W if k == 'w' else WQ_POS_I)[n] = nt * 204800 + st * 1024 + cl * 16
def wq_joff(j): return (j // 2) * 5120 + (j % 2) * 512
def build_WQ(Wp, Fi):
    img = np.zeros(16 * 40 * 5 * 512, np.uint16)
    for src, pos in ((Wp, WQ_POS_W), (Fi, WQ_POS_I)):
        u = f2bf(src).reshape(-1, 80, 8)
        for j in range(80):
            idx = (pos + wq_joff(j)) // 2
            img[idx[:, None] + np.arange(8)[None, :]] = u[:, j]
    return img
def o_c(ks, g, e8):
    oc, f = divmod(ks, 5); u = 8 * f + e8
    return 20 * (8 * oc + u // 5) + 5 * g + u % 5
def out_col(nt, t5, i):
    gd, r = divmod(i, 4)
    if t5 < 4: return 80 * nt + 32 * (t5 // 2) + 8 * gd + 4 * (t5 % 2) + r
    return 80 * nt + 64 + 4 * gd + r
OC = np.array([[[o_c(ks, g, e) for e in range(8)] for g in range(4)] for ks in range(20)])
assert sorted(OC.ravel()) == list(range(640))
OUTCOL = np.array([[[out_col(nt, t, i) for i in range(16)] for t in range(5)] for nt in range(8)])
def build_WO(M):
    u = f2bf(M); img = np.zeros((8, 20, 5, 4, 16, 8), np.uint16)
    for nt in range(8):
        for t in range(5):
            img[nt, :, t] = u[OC[:, :, None, :], OUTCOL[nt, t][None, None, :, None]]
    return img.ravel()
WO_POS = np.zeros(640, np.int64)
for nt in range(8):
    for t in range(5):
        for i in range(16): WO_POS[OUTCOL[nt, t, i]] = nt * 102400 + t * 1024 + i * 16
def build_WT(wr, wi):
    img = np.zeros((320, 8, 64, 4, 2), np.uint16)
    for a, ri in ((wr, 0), (wi, 1)):
        m = a[:, FREQ].reshape(8, 4, 64, 320)
        img[..., ri] = m.transpose(3, 0, 2, 1)
    return img.ravel()

def colpass(xh, ssq, wr, wi):
    r = (1 / np.sqrt(ssq / D + 1e-5) / 2048).astype(np.float32)
    u = rb(xh * r[:, None])
    uc = u[:, 0::2] + 1j * u[:, 1::2]; uc[:, 0] = uc[:, 0].real
    Wc = (wr + 1j * wi)[:, FREQ]
    rc = lambda z: rb(z.real) + 1j * rb(z.imag)
    N1, N2 = 64, 32
    n1 = np.arange(N1); n2 = np.arange(N2)
    F1 = rc(np.exp(-2j * np.pi * np.outer(n1, n1) / N1)); F2 = rc(np.exp(-2j * np.pi * np.outer(n2, n2) / N2))
    tw = np.exp(-2j * np.pi * np.outer(n2, n1) / S)
    a = uc.reshape(N1, N2, 320)
    d1 = rc(np.einsum('abc,ak->bkc', a, F1) * tw[:, :, None])
    d2 = rc(np.einsum('bkc,bj->jkc', d1, F2) * Wc.reshape(N2, N1, 320))
    d3 = rc(np.einsum('jkc,jm->mkc', d2, F2.conj()) * tw.conj()[:, :, None])
    y = np.einsum('mkc,ka->amc', d3, F1.conj()).reshape(S, 320)
    out = xh.copy()
    out[:, 0::2] += y.real.astype(np.float32); out[:, 3::2] += y.imag[:, 1:].astype(np.float32)
    return rb(out)
def ssq_of(xh):
    t = xh.astype(np.float64) ** 2
    return t.sum(1) - t[:, 1]
PQ_ORDER = np.array([[40 * t + d for d in list(range(0, 16)) + list(range(20, 36)) + [16, 17, 18, 19, 36, 37, 38, 39]] for t in range(16)]).ravel()
def qkv_phase(xh, Wp):
    r = (1 / np.sqrt(ssq_of(xh) / D + 1e-5)).astype(np.float32)
    qkv = (xh @ Wp.T) * r[:, None]
    q, k, v = qkv[:, :640], qkv[:, 640:1280], qkv[:, 1280:]
    phi = lambda t: np.where(t > 0, t + 1, np.exp(np.minimum(t, 0))) + 1e-6
    pq, pk, v = rb(phi(q)), rb(phi(k)).reshape(S, H, Dh), rb(v).reshape(S, H, Dh)
    kv = np.einsum('shd,she->hed', pk, v); z = pk.sum(0)
    kvs = np.zeros((32, 21, 24), np.float32)
    full = np.concatenate([z[:, None, :], kv], 1)
    st = full.copy()
    st[0::2] = full[0::2][:, [1, 2, 3, 4, 0] + list(range(5, 21))]
    kvs[:, :, :16] = st[:, :, :16]
    kvs[0::2, :, 16:20] = st[0::2, :, 16:]; kvs[1::2, :, 20:24] = st[1::2, :, 16:]
    return pq, kvs, full
def o_phase(pq, full):
    f = rb(full); p = pq.reshape(S, H, Dh)
    num = np.einsum('shd,hed->she', p, f[:, 1:]); den = np.einsum('shd,hd->sh', p, f[:, 0]) + 1e-6
    return rb(num / den[:, :, None]).reshape(S, D)
def expected(d):
    x0 = bf2f(d['A_x'])[0]; wr = bf2f(d['A_w_r']); wi = bf2f(d['A_w_i']); wqkv = bf2f(d['B_wqkv']); wo = bf2f(d['B_wo'])
    E = {}
    xh0 = rb(fft640(x0)); E['XH0'] = xh0
    x64 = x0.astype(np.float64); E['SSQ0'] = ((x64 ** 2).sum(1) - x64.sum(1) ** 2 / D)
    Wp = rb(fft640(wqkv.T.copy())); Wp[:, 1] = 0; E['Wp'] = Wp
    Fi = rb(fft640(np.eye(D, dtype=np.float32))); E['Fi'] = Fi
    wop = rb(fft640(wo)); E['wop'] = wop
    E['WQ'] = build_WQ(Wp, Fi); E['WOF'] = build_WO(wop); E['WOT'] = build_WO(wo); E['WT'] = build_WT(d['A_w_r'], d['A_w_i'])
    xh1 = colpass(xh0, E['SSQ0'], wr, wi); E['XH1'] = xh1
    pq, kvs, full = qkv_phase(xh1, Wp); E['PQ1'] = pq; E['KVS1'] = kvs
    o1 = o_phase(pq, full)
    xh2f = xh1 + o1 @ wop; xh2 = rb(xh2f); E['XH2'] = xh2; E['SSQ2'] = ssq_of(xh2f)
    xh3 = colpass(xh2, E['SSQ2'], wr, wi); E['XH3'] = xh3
    x3 = rb(xh3 @ Fi.T); E['X3'] = x3
    pq, kvs, full = qkv_phase(xh3, Wp); E['PQ2'] = pq; E['KVS2'] = kvs
    o2 = o_phase(pq, full)
    E['out'] = rb(x3 + o2 @ wo)
    return E
if __name__ == '__main__':
    d = np.load('ref0.npz'); E = expected(d)
    ref = bf2f(d['out'])[0]; ex = d['exact'][0]
    rel = lambda a, b: np.linalg.norm(a - b) / np.linalg.norm(b)
    print('vs exact', rel(E['out'], ex), 'vs ref', rel(E['out'], ref), 'WS_USED', WS_USED)
    print(T1table().shape, T2table().shape)
```

```python
import sys
from gen import *
import gen_k2
def main():
    upto = 7
    for a in sys.argv:
        if a.startswith('--upto='): upto = int(a.split('=')[1])
    bodies = [(gen_k1(), ['k1_kernel']), (gen_k2.gen_k2(), ['k2_kernel', 'k5_kernel'])]
    L = [('k1_kernel', 256, 256, K1_LDS), ('k2_kernel', 240, 512, gen_k2.K2_LDS)]
    try:
        import gen_k3
        bodies.append((gen_k3.gen_k3(False), ['k3_kernel'])); bodies.append((gen_k3.gen_k3(True), ['k6_kernel']))
        L.append(('k3_kernel', 256, gen_k3.K3_BLOCK, gen_k3.K3_LDS))
        import gen_k4
        bodies.append((gen_k4.gen_k4(), ['k4_kernel', 'k7_kernel']))
        L += [('k4_kernel', 256, gen_k4.K4_BLOCK, gen_k4.K4_LDS), ('k5_kernel', 184, 512, gen_k2.K2_LDS), ('k6_kernel', 256, gen_k3.K3_BLOCK, gen_k3.K6_LDS), ('k7_kernel', 256, gen_k4.K4_BLOCK, gen_k4.K4_LDS)]
    except ImportError as e:
        print('partial build:', e, file=sys.stderr)
        L.append(('k5_kernel', 184, 512, gen_k2.K2_LDS))
    L = L[:upto]
    if os.environ.get('PFWQ'):
        L = [(n, 256 if n == 'k5_kernel' else g, b, l) for (n, g, b, l) in L]
    if os.environ.get('NOSIDE'):
        L = [(n, 160 if n in ('k2_kernel', 'k5_kernel') else g, b, l) for (n, g, b, l) in L]
    if os.environ.get('NOF'):
        L = [(n, 128 if n == 'k1_kernel' else g, b, l) for (n, g, b, l) in L]
    if SDIAG:
        ke = Kern(); ke('ke_kernel:'); stamp_start(ke, 9); ke('s_endpgm')
        bodies.append((ke, ['ke_kernel']))
        L = [(n, g + 8, b, l) for (n, g, b, l) in L] + [('ke_kernel', 8, 64, 0)]
    used = {l[0] for l in L}
    bodies = [(k, n) for (k, n) in bodies if any(x in used for x in n)]
    out = 'diag.s' if DIAG else 'cdna_kernels/' + NAME + '.s'
    for a in sys.argv:
        if a.startswith('--out='): out = a.split('=')[1]
    open(out, 'w').write(build(L, bodies))
    for k, n in bodies: print(n, 'insts', len(k.out), 'regs', k.max_regs())
if __name__ == '__main__':
    main()
```

```python
import sys
import os
import math
import numpy as np
from asmlib import Kern, fhex, vr, ar, sr
import maps as M

DIAG = '--diag' in sys.argv
HDIAG = '--hdiag' in sys.argv
SDIAG = '--sdiag' in sys.argv
ADIAG = [a for a in sys.argv if a.startswith('--adiag=')]
NAME = 'interleave_layers__spectral_gfnet__linear_attn_block__prompt'

TAB_T1 = 0
TAB_T2 = 6144
TAB_WQW = TAB_T2 + 40960
TAB_WQI = TAB_WQW + 1920 * 4
TAB_WOP = TAB_WQI + 640 * 4
TAB_SLOT = TAB_WOP + 640 * 4
TAB_CP = TAB_SLOT + 324 * 4
TAB_TW = TAB_CP + 4 * 2 * 16 * 16 * 4
TAB_BYTES = TAB_TW + 32768

WS, AUX, TAB, AUX2 = 's[4:7]', 's[8:11]', 's[12:15]', 's[16:19]'


BSS = os.environ.get('BSS', '0') == '1'


def srd_from_arg(k, base, argoff, nbytes):
    if BSS and argoff == 64:
        k(f's_getpc_b64 s[{base}:{base + 1}]')
        k(f's_add_u32 s{base}, s{base}, wsbuf@rel32@lo+4')
        k(f's_addc_u32 s{base + 1}, s{base + 1}, wsbuf@rel32@hi+12')
        k(f's_mov_b32 s{base + 2}, {M.STAMP}')
        k(f's_mov_b32 s{base + 3}, 0x20000')
        return
    k(f's_load_dwordx2 s[{base}:{base + 1}], s[0:1], {argoff}')
    k(f's_mov_b32 s{base + 2}, {nbytes}')
    k(f's_mov_b32 s{base + 3}, 0x20000')


def srd_tab(k):
    k('s_getpc_b64 s[12:13]')
    k('s_add_u32 s12, s12, tabs@rel32@lo+4')
    k('s_addc_u32 s13, s13, tabs@rel32@hi+12')
    k(f's_mov_b32 s14, {TAB_BYTES}')
    k('s_mov_b32 s15, 0x20000')


def stamp_start(k, kidx):
    if ADIAG:
        k('s_cmp_lg_u32 s2, 0')
        k(f's_cbranch_scc1 sd_{kidx}')
        k('s_memrealtime s[8:9]')
        k('s_load_dwordx2 s[4:5], s[0:1], 64')
        k(f's_mov_b32 s6, {M.WS_USED}')
        k('s_mov_b32 s7, 0x20000')
        k('s_waitcnt lgkmcnt(0)')
        k('v_mov_b32 v1, s8')
        k(f'v_mov_b32 v2, {M.STAMP + 4 * kidx}')
        if kidx == 7:
            a, b, mul = [int(x) for x in ADIAG[0].split('=')[1].split(',')]
            k(f'v_mov_b32 v2, {M.STAMP}')
            k(f'buffer_load_dword v3, v2, s[4:7], 0 offen offset:{4 * a} sc1')
            if b < 7:
                k(f'buffer_load_dword v1, v2, s[4:7], 0 offen offset:{4 * b} sc1')
            k('v_sub_u32 v1, v1, v3')
            k('v_readfirstlane_b32 s10, v1')
            k(f's_mul_i32 s10, s10, {mul}')
            k('s_min_u32 s10, s10, 100000')
            k('s_memrealtime s[12:13]')
            k('s_waitcnt lgkmcnt(0)')
            k('ad_spin: ; loop')
            k('s_memrealtime s[14:15]')
            k('s_waitcnt lgkmcnt(0)')
            k('s_sub_u32 s14, s14, s12')
            k('s_cmp_lt_u32 s14, s10')
            k('s_cbranch_scc1 ad_spin')
        else:
            k('buffer_store_dword v1, v2, s[4:7], 0 offen')
        k('s_endpgm')
        k(f'sd_{kidx}:')
        k('s_cmp_lt_u32 s2, 8')
        k(f's_cbranch_scc0 sd2_{kidx}')
        k('s_endpgm')
        k(f'sd2_{kidx}:')
        k('s_sub_u32 s2, s2, 8')
    if SDIAG:
        k('s_cmp_lg_u32 s2, 0')
        k(f's_cbranch_scc1 sd_{kidx}')
        k('s_memrealtime s[8:9]')
        k('s_load_dwordx2 s[4:5], s[0:1], 56')
        k('s_mov_b32 s6, 256')
        k('s_mov_b32 s7, 0x20000')
        k('s_waitcnt lgkmcnt(0)')
        k('v_mov_b32 v1, s8')
        k('v_mov_b32 v2, 0')
        k('buffer_store_dword v1, v2, s[4:7], 0 offen')
        k('s_endpgm')
        k(f'sd_{kidx}:')
        k('s_cmp_lt_u32 s2, 8')
        k(f's_cbranch_scc0 sd2_{kidx}')
        k('s_endpgm')
        k(f'sd2_{kidx}:')
        k('s_sub_u32 s2, s2, 8')
    if HDIAG:
        k('s_memrealtime s[80:81]')
        k('s_load_dwordx2 s[84:85], s[0:1], 56')
        k(f's_mov_b32 s94, {kidx}')
    if DIAG:
        k('s_memrealtime s[80:81]')
        k('s_memtime s[76:77]')
        k(f's_mov_b32 s94, {M.STAMP + kidx * 262144}')
        for n in range(1, 7):
            k(f's_mov_b32 s{80 + 2 * n}, 0')


def stamp(k, n):
    if DIAG:
        k(f's_memrealtime s[{80 + 2 * n}:{81 + 2 * n}]')
        k('s_waitcnt lgkmcnt(0)' if False else 's_nop 0')


def stamp_end(k, kidx):
    if DIAG:
        k('s_waitcnt vmcnt(0) lgkmcnt(0)')
        k('s_memrealtime s[98:99]')
        k('s_memtime s[78:79]')
        k('s_waitcnt lgkmcnt(0)')
        k('s_sub_u32 s78, s78, s76')
        k('v_mov_b32 v5, s78')
        for n in range(7):
            k(f'v_mov_b32 v{8 + n}, s{80 + 2 * n}')
        k('v_mov_b32 v15, s98')
        k('v_lshrrev_b32 v4, 6, v0')
        k('v_lshlrev_b32 v4, 6, v4')
        k('s_lshl_b32 s95, s2, 9')
        k(f's_add_u32 s95, s95, s94')
        k(f'buffer_store_dwordx4 v[8:11], v4, {WS}, s95 offen')
        k(f'buffer_store_dwordx4 v[12:15], v4, {WS}, s95 offen offset:16')
        k(f'buffer_store_dword v5, v4, {WS}, s95 offen offset:32')


def endk(k, kidx):
    if HDIAG:
        uid = len(k.raw)
        k('s_and_b32 s95, s2, 63')
        k('v_readfirstlane_b32 s86, v0')
        k('s_and_b32 s86, s86, 0xc0')
        k('s_or_b32 s95, s95, s86')
        k('s_cmp_lg_u32 s95, 0')
        k(f's_cbranch_scc1 hd_{kidx}_{uid}')
        k('s_waitcnt vmcnt(0) lgkmcnt(0)')
        k('s_memrealtime s[82:83]')
        k('s_sub_u32 s95, 6, s94')
        k('s_lshl_b32 s95, s95, 9')
        k('s_add_u32 s84, s84, s95')
        k('s_addc_u32 s85, s85, 0')
        k('s_mov_b32 s86, 256')
        k('s_mov_b32 s87, 0x20000')
        k('s_lshl_b32 s95, s94, 3')
        k('s_waitcnt lgkmcnt(0)')
        k('s_sub_u32 s80, 0, s80')
        k('v_mov_b32 v4, s80')
        k('v_mov_b32 v5, s82')
        k('v_mov_b32 v6, 0')
        k('s_mov_b64 exec, 1')
        k('buffer_atomic_umax v4, v6, s[84:87], s95 offen')
        k('buffer_atomic_umax v5, v6, s[84:87], s95 offen offset:4')
        k(f'hd_{kidx}_{uid}: ; nojoinwait2')
    stamp_end(k, kidx)
    k('s_endpgm')


XP = 1296
X_IMG = 16 * XP
E_BYTES = 20480


def fft640_tables(k, vl16, sw):
    for f in range(4):
        k(f'buffer_load_dwordx4 {ar(4 * f, 4)}, {vl16}, {TAB}, 0 offen offset:{1024 * f}')
    k('s_movk_i32 s30, 0x1000')
    for f in range(4, 6):
        k(f'buffer_load_dwordx4 {ar(4 * f, 4)}, {vl16}, {TAB}, s30 offen offset:{1024 * (f - 4)}')
    k(f's_mul_i32 s30, {sw}, 10240')
    k(f's_add_u32 s30, s30, {TAB_T2}')
    for f in range(10):
        if f and f % 4 == 0:
            k('s_add_u32 s30, s30, 4096')
        k(f'buffer_load_dwordx4 {vr(176 + 4 * f, 4)}, {vl16}, {TAB}, s30 offen offset:{1024 * (f % 4)}')


def fft640_tables_dma(k, vl16, swv, base):
    k(f's_mul_i32 s30, {swv}, 6144')
    k(f's_add_u32 m0, s30, {base}')
    for f in range(4):
        k(f'buffer_load_dwordx4 {vl16}, {TAB}, s30 offen offset:{1024 * f} lds')
    k('s_add_u32 s30, s30, 4096')
    k(f's_add_u32 m0, s30, {base}')
    for f in range(2):
        k(f'buffer_load_dwordx4 {vl16}, {TAB}, s30 offen offset:{1024 * f} lds')


def fft640_tables_read(k, vl16, sw, base, vt1, vt2):
    k(f'v_add_u32 {vt1}, {base}, {vl16}')
    k(f's_mul_i32 s30, {sw}, 10240')
    k(f's_add_u32 s30, s30, {TAB_T2}')
    k(f'v_add_u32 {vt2}, s30, {vt1}')
    for f in range(6):
        k(f'ds_read_b128 {ar(4 * f, 4)}, {vt1} offset:{1024 * f}')


def fft640_tables_read2(k, vt2):
    for f in range(10):
        k(f'ds_read_b128 {vr(176 + 4 * f, 4)}, {vt2} offset:{1024 * f}')


B0, B1, D1, PK = 40, 56, 72, 120


def fft640_core_from_rows(k, vA, vB):
    R = 16
    stamp(k, 2)
    for i in range(8):
        k(f'ds_read_b64 {vr(R + 2 * i, 2)}, {vA} offset:{512 * (i // 4) + 32 * (i % 4)}')
    for i in range(2):
        k(f'ds_read_b64 {vr(R + 16 + 2 * i, 2)}, {vB} offset:{32 * i}')
    k('s_mov_b32 s31, 0x05040100')
    k('s_mov_b32 s32, 0x07060302')
    for kk in range(5):
        for q in range(4):
            dst = B0 + 4 * q + kk if kk < 4 else B1 + 4 * q
            sel = 's31' if q % 2 == 0 else 's32'
            k(f'v_perm_b32 v{dst}, v{R + 2 * (2 * kk + 1) + q // 2}, v{R + 2 * (2 * kk) + q // 2}, {sel}')


def fft640_zero_b1(k, keep):
    stamp(k, 1)
    for q in range(4):
        for x in range(keep, 4):
            k(f'v_mov_b32 v{B1 + 4 * q + x}, 0')


def fft640_stage1(k, vEw, mid=None):
    stamp(k, 3)
    for q in range(4):
        for t in range(3):
            d = vr(D1 + 12 * q + 4 * t, 4)
            k(f'v_mfma_f32_16x16x32_bf16 {d}, {ar(8 * t, 4)}, {vr(B0 + 4 * q, 4)}, 0')
    for q in range(4):
        for t in range(3):
            d = vr(D1 + 12 * q + 4 * t, 4)
            k(f'v_mfma_f32_16x16x32_bf16 {d}, {ar(8 * t + 4, 4)}, {vr(B1 + 4 * q, 4)}, {d}')
    if mid:
        mid()
    for i in range(5):
        for ri in range(2):
            sg = 2 * i + ri
            for qq in range(2):
                k(f'v_cvt_pk_bf16_f32 v{PK + 4 * i + 2 * ri + qq}, v{D1 + 12 * (2 * qq) + sg}, v{D1 + 12 * (2 * qq + 1) + sg}')
        k(f'ds_write_b128 {vEw}, {vr(PK + 4 * i, 4)} offset:{1024 * i}')
    k('s_waitcnt lgkmcnt(0)')
    k('s_barrier')


FR, D2 = 16, 72


def fft640_stage2(k, vEr, swapped):
    stamp(k, 4)
    for i in range(5):
        k(f'ds_read_b128 {vr(FR + 4 * i, 4)}, {vEr} offset:{1024 * i}')
    for i in range(5):
        for t in range(2):
            d = vr(D2 + 8 * i + 4 * t, 4)
            T = vr(176 + 8 * i + 4 * t, 4)
            if swapped:
                k(f'v_mfma_f32_16x16x32_bf16 {d}, {vr(FR + 4 * i, 4)}, {T}, 0')
            else:
                k(f'v_mfma_f32_16x16x32_bf16 {d}, {T}, {vr(FR + 4 * i, 4)}, 0')


def fft640_store_normal(k, vout, sbase, bstep, fl=''):
    stamp(k, 5)
    for i in range(5):
        for x in range(4):
            k(f'v_cvt_pk_bf16_f32 v{PK + 4 * i + x}, v{D2 + 8 * i + 2 * x}, v{D2 + 8 * i + 2 * x + 1}')
        k(f'buffer_store_dwordx4 {vr(PK + 4 * i, 4)}, {vout}, {WS}, {sbase} offen{fl}')
        if i < 4:
            k(f's_add_u32 {sbase}, {sbase}, {bstep}')


def touch_code2(k, vt):
    if os.environ.get("NOTC"):
        return
    k('s_getpc_b64 s[52:53]')
    k('s_add_u32 s52, s52, k2_kernel@rel32@lo+4')
    k('s_addc_u32 s53, s53, k2_kernel@rel32@hi+12')
    k('s_mov_b32 s54, text_end-k2_kernel')
    k('s_mov_b32 s55, 0x20000')
    k('s_lshr_b32 s33, s2, 3')
    k('s_lshl_b32 s33, s33, 11')
    k(f'v_lshrrev_b32 {vt}, 5, v0')
    k(f'v_lshlrev_b32 {vt}, 24, {vt}')
    k(f'v_lshl_add_u32 {vt}, v0, 6, {vt}')
    k(f'buffer_load_dword {vt}, {vt}, s[52:55], s33 offen')
    k(f's_add_u32 s33, s33, {TAB_WQW}')
    k('v_lshrrev_b32 v167, 5, v0')
    k('v_lshlrev_b32 v167, 24, v167')
    k('v_lshl_add_u32 v167, v0, 6, v167')
    k(f'buffer_load_dword v167, v167, {TAB}, s33 offen')
    if os.environ.get('DESC', '0') == '1':
        k('s_getpc_b64 s[60:61]')
        k('s_add_u32 s60, s60, desc_start@rel32@lo+4')
        k('s_addc_u32 s61, s61, desc_start@rel32@hi+12')
        k('s_mov_b32 s62, 512')
        k('s_mov_b32 s63, 0x20000')
        k('v_lshlrev_b32 v166, 6, v0')
        k('buffer_load_dword v166, v166, s[60:63], 0 offen')


def touch_tlb(k, vt, shift):
    k('s_lshr_b32 s33, s2, 3')
    k('s_lshl_b32 s33, s33, 8')
    k(f'v_add_lshl_u32 {vt}, s33, v0, {shift}')
    k(f'buffer_load_dword v164, {vt}, {WS}, 0 offen')
    k(f'buffer_load_dword v165, {vt}, s[56:59], 0 offen')


def touch_weights(k, vt, vd):
    if os.environ.get("NOTW"):
        return
    T = int(vt[1:])
    a, b, c = f'v{T + 1}', f'v{T + 2}', f'v{T + 3}'
    k('s_and_b32 s33, s2, 7')
    k('s_lshr_b32 s34, s2, 3')
    k(f'v_mul_u32_u24 {a}, 171, v0')
    k(f'v_lshrrev_b32 {a}, 9, {a}')
    k(f'v_mul_u32_u24 {b}, 3, {a}')
    k(f'v_sub_u32 {b}, v0, {b}')
    k(f'v_lshlrev_b32 {b}, 7, {b}')
    k(f'v_min_u32 {b}, 156, {b}')
    k(f'v_mul_u32_u24 {a}, 3840, {a}')
    k(f'v_add_u32 {a}, {a}, {b}')
    k('v_cmp_gt_u32 vcc, 120, v0')
    k(f'v_mov_b32 {c}, 0x40000000')
    k(f'v_cndmask_b32 {a}, {c}, {a}, vcc')
    k('s_sub_u32 s35, s34, 16')
    k(f's_mul_i32 s35, s35, {40 * 3840}')
    k('s_and_b32 s36, s33, 1')
    k('s_mul_i32 s36, s36, 640')
    k('s_add_u32 s35, s35, s36')
    k('s_and_b32 s36, s33, 6')
    k('s_mul_i32 s36, s36, 80')
    k('s_add_u32 s35, s35, s36')
    k(f'buffer_load_dword v{T + 5}, {a}, s[44:47], s35 offen offset:1280')
    k(f'buffer_load_dword v{T + 7}, {a}, s[44:47], s35 offen offset:2560')
    k(f'buffer_load_dword {a}, {a}, s[44:47], s35 offen')
    k(f'v_subrev_u32 {vt}, 192, v0')
    k(f'v_mul_u32_u24 {b}, 13, {vt}')
    k(f'v_lshrrev_b32 {b}, 8, {b}')
    k('v_cmp_gt_u32 vcc, 60, ' + vt)
    k(f'v_mul_u32_u24 {c}, 20, {b}')
    k(f'v_sub_u32 {vt}, {vt}, {c}')
    k(f'v_lshl_add_u32 {b}, {b}, 3, s33')
    k(f'v_mul_u32_u24 {c}, 52, {b}')
    k(f'v_lshrrev_b32 {c}, 8, {c}')
    k(f'v_mul_u32_u24 v{T + 4}, 5, {c}')
    k(f'v_sub_u32 {b}, {b}, v{T + 4}')
    k('s_and_b32 s35, s34, 7')
    k(f'v_lshl_add_u32 {b}, {b}, 3, s35')
    k(f'v_mul_u32_u24 v{T + 4}, 52, {b}')
    k(f'v_lshrrev_b32 v{T + 4}, 8, v{T + 4}')
    k(f'v_mad_u32_u24 {b}, v{T + 4}, 15, {b}')
    k(f'v_mul_u32_u24 {c}, 160, {c}')
    k(f'v_add_u32 {b}, {b}, {c}')
    k(f'v_mul_u32_u24 {b}, 1280, {b}')
    k(f'v_lshl_add_u32 {b}, {vt}, 6, {b}')
    k(f'v_mov_b32 {c}, 0x40000000')
    k(f'v_cndmask_b32 {b}, {c}, {b}, vcc')
    k('s_lshr_b32 s35, s34, 3')
    k(f's_mul_i32 s35, s35, {5 * 1280}')
    k(f'buffer_load_dword v{T + 6}, {b}, s[48:51], s35 offen')
    k(f's_sub_u32 s35, s35, {10 * 1280}')
    k(f'buffer_load_dword {b}, {b}, s[48:51], s35 offen')


K1_LDS = X_IMG + E_BYTES


EARLY = os.environ.get('EARLY', '0') == '1'


def gen_k1():
    k = Kern()
    k('k1_kernel:')
    stamp_start(k, 0)
    k('s_cmp_ge_u32 s2, 256')
    k('s_cbranch_scc1 k1_exit')
    srd_from_arg(k, 4, 64, M.WS_USED)
    srd_from_arg(k, 44, 32, 640 * 3840)
    srd_from_arg(k, 48, 40, 640 * 1280)
    TLB = int(os.environ.get('TLB', '0'))
    if TLB:
        srd_from_arg(k, 56, 48, 2048 * 1280)
    k('s_cmp_ge_u32 s2, 128')
    k('s_cbranch_scc1 k1_f')
    srd_from_arg(k, 8, 0, 2048 * 1280)
    srd_tab(k)
    k('v_and_b32 v1, 63, v0')
    k('v_lshrrev_b32 v2, 6, v0')
    k('v_readfirstlane_b32 s20, v2')
    k('v_lshrrev_b32 v3, 4, v0')
    k('v_and_b32 v4, 15, v0')
    k('s_lshl_b32 s21, s2, 4')
    k('s_mul_i32 s22, s21, 1280')
    k('v_mul_u32_u24 v5, 1280, v3')
    k('v_lshl_add_u32 v5, v4, 4, v5')
    k(f'v_mul_u32_u24 v6, {XP}, v3')
    k('v_lshl_add_u32 v6, v4, 4, v6')
    k('v_lshlrev_b32 v7, 4, v1')
    X = 140
    for i in range(5):
        k(f'buffer_load_dwordx4 {vr(X + 4 * i, 4)}, v5, {AUX}, s22 offen offset:{256 * i}')
    fft640_tables(k, 'v7', 's20')
    touch_code2(k, 'v162')
    if TLB:
        touch_tlb(k, 'v163', TLB)
    k('v_lshrrev_b32 v8, 4, v1')
    k(f'v_mul_u32_u24 v9, {XP}, v4')
    k('s_lshl_b32 s23, s20, 3')
    k('v_add_u32 v9, s23, v9')
    k('v_lshl_add_u32 v10, v8, 7, v9')
    k('v_lshl_add_u32 v11, v8, 6, v9')
    k('v_add_u32 v11, 1024, v11')
    k('v_mul_u32_u24 v12, 5120, v8')
    k('v_lshl_add_u32 v12, v4, 4, v12')
    k('s_lshl_b32 s23, s20, 8')
    k(f's_add_u32 s23, s23, {X_IMG}')
    k('v_add_u32 v12, s23, v12')
    k('s_mul_i32 s23, s20, 5120')
    k(f's_add_u32 s23, s23, {X_IMG}')
    k('v_add_u32 v13, s23, v7')
    k('v_lshlrev_b32 v14, 11, v8')
    k('v_lshl_add_u32 v14, v4, 4, v14')
    k(f's_mul_i32 s24, s20, {5 * 4 * 2048}')
    k('s_lshr_b32 s23, s2, 3')
    k(f's_mul_i32 s23, s23, {M.TS}')
    k('s_add_u32 s24, s24, s23')
    k('s_and_b32 s23, s2, 7')
    k('s_lshl_b32 s23, s23, 8')
    k('s_add_u32 s24, s24, s23')
    k(f's_add_u32 s24, s24, {M.XH0}')
    fft640_zero_b1(k, 1)
    k('v_mov_b32 v36, 0')
    k('v_mov_b32 v37, 0')
    k('v_mov_b32 v38, 0x3f803f80')
    for i in range(5):
        k(f'ds_write_b128 v6, {vr(X + 4 * i, 4)} offset:{256 * i}')
    k('s_waitcnt lgkmcnt(0)')
    k('s_barrier')
    fft640_core_from_rows(k, 'v10', 'v11')
    fft640_stage1(k, 'v12')
    fft640_stage2(k, 'v13', False)
    fft640_store_normal(k, 'v14', 's24', 4 * 2048)
    for i in range(20):
        k(f'v_dot2_f32_bf16 v36, v{X + i}, v{X + i}, v36')
        k(f'v_dot2_f32_bf16 v37, v{X + i}, v38, v37')
    for sh in (8, 4, 2, 1):
        k(f'v_add_f32_dpp v36, v36, v36 row_ror:{sh} row_mask:0xf bank_mask:0xf')
        k(f'v_add_f32_dpp v37, v37, v37 row_ror:{sh} row_mask:0xf bank_mask:0xf')
    k(f'v_mul_f32 v38, {fhex(-1.0 / 640)}, v37')
    k('v_fmac_f32 v36, v38, v37')
    k('v_add_u32 v39, s21, v3')
    k('v_lshlrev_b32 v39, 2, v39')
    k(f's_mov_b32 s25, {M.SSQ0}')
    k(f'buffer_store_dword v36, v39, {WS}, s25 offen')
    endk(k, 0)
    k('k1_f:')
    srd_from_arg(k, 8, 8, 2048 * 642)
    srd_from_arg(k, 16, 16, 2048 * 642)
    srd_tab(k)
    k('s_sub_u32 s20, s2, 128')
    k('s_lshr_b32 s21, s20, 3')
    k('s_and_b32 s22, s20, 7')
    k('s_lshl_b32 s23, s22, 8')
    k('s_lshl_b32 s24, s21, 2')
    k('s_add_u32 s23, s23, s24')
    k('s_mul_i32 s23, s23, 642')
    k('v_lshlrev_b32 v1, 4, v0')
    k('v_cmp_gt_u32 vcc, 161, v0')
    k('v_mov_b32 v2, 0x40000000')
    k('v_cndmask_b32 v2, v2, v1, vcc')
    CH = 2576
    for r in range(4):
        k(f'buffer_load_dwordx4 {vr(16 + 4 * r, 4)}, v2, {AUX}, s23 offen')
        k(f'buffer_load_dwordx4 {vr(32 + 4 * r, 4)}, v2, {AUX2}, s23 offen')
        if r < 3:
            k(f's_add_u32 s23, s23, {64 * 642}')
    k('v_lshrrev_b32 v3, 2, v0')
    k('v_and_b32 v4, 3, v0')
    k('v_lshlrev_b32 v5, 2, v3')
    k(f's_mov_b32 s25, {TAB_SLOT + 4}')
    for i in range(5):
        k(f'buffer_load_dword v{48 + i}, v5, {TAB}, s25 offen offset:{256 * i}')
    if EARLY:
        touch_weights(k, 'v104', None)
    touch_code2(k, 'v13')
    if TLB:
        touch_tlb(k, 'v163', TLB)
    ZB = M.ZERO_END - M.ZERO_START
    per = (ZB + 127) // 128
    assert per <= 4096 and per % 16 == 0, per
    k('v_mov_b32 v8, 0')
    k('v_mov_b32 v9, 0')
    k('v_mov_b32 v10, 0')
    k('v_mov_b32 v11, 0')
    k(f'v_cmp_gt_u32 vcc, {per // 16}, v0')
    k('v_mov_b32 v6, 0x40000000')
    k('v_cndmask_b32 v6, v6, v1, vcc')
    k(f's_mul_i32 s26, s20, {per}')
    k(f's_add_u32 s26, s26, {M.ZERO_START}')
    k(f'buffer_store_dwordx4 v[8:11], v6, {WS}, s26 offen')
    k('v_cmp_gt_u32 vcc, 161, v0')
    k('s_and_saveexec_b64 s[28:29], vcc')
    for r in range(4):
        k(f'ds_write_b128 v1, {vr(16 + 4 * r, 4)} offset:{CH * r}')
        k(f'ds_write_b128 v1, {vr(32 + 4 * r, 4)} offset:{CH * (4 + r)}')
    k('s_mov_b64 exec, s[28:29]')
    k('v_mul_u32_u24 v12, 642, v4')
    k('v_lshl_add_u32 v12, v3, 1, v12')
    k('s_lshl_b32 s27, s22, 6')
    k('s_add_u32 s27, s27, s24')
    k('s_lshl_b32 s27, s27, 4')
    k(f's_add_u32 s27, s27, {M.WT}')
    k('s_waitcnt lgkmcnt(0)')
    k('s_barrier')
    if not EARLY:
        touch_weights(k, 'v104', None)
    for i in range(5):
        for r in range(4):
            k(f'ds_read_u16 v{64 + 4 * i + r}, v12 offset:{CH * r + 2 + 128 * i}')
            k(f'ds_read_u16 v{84 + 4 * i + r}, v12 offset:{CH * (4 + r) + 2 + 128 * i}')
    for i in range(5):
        for r in range(4):
            k(f'v_lshl_or_b32 v{64 + 4 * i + r}, v{84 + 4 * i + r}, 16, v{64 + 4 * i + r}')
        k(f'v_lshl_add_u32 v{48 + i}, v4, 4, v{48 + i}')
        k(f'buffer_store_dwordx4 {vr(64 + 4 * i, 4)}, v{48 + i}, {WS}, s27 offen')
    endk(k, 0)
    k('k1_exit:')
    k('s_endpgm')
    return k


def tables_asm():
    T1 = M.T1table().ravel().view(np.uint32)
    T2 = M.T2table().ravel().view(np.uint32)
    slot = np.zeros(324, np.uint32)
    for cs in range(320):
        slot[M.FREQ[cs]] = cs * 8192
    tw = np.zeros((4, 2, 2, 2, 64, 4), np.float32)
    for w in range(4):
        for T in range(2):
            for l in range(64):
                a, gg = l % 16, l // 16
                for r in range(4):
                    for j, ang in enumerate(((16 * w + a) * (16 * T + 4 * gg + r), (16 * T + a) * (16 * w + 4 * gg + r))):
                        tw[w, j, T, 0, l, r] = math.cos(2 * math.pi * ang / 2048)
                        tw[w, j, T, 1, l, r] = math.sin(2 * math.pi * ang / 2048)
    cp = np.zeros((4, 2, 16, 16), np.uint32)
    for w in range(4):
        for gh in range(2):
            for l in range(16):
                for i in range(5):
                    for t in range(2):
                        cp[w, gh, l, 2 * i + t] = M.WO_POS[32 * (5 * w + i) + 8 * (l // 4) + 4 * t + l % 4]
                    cp[w, gh, l, 10 + i] = M.WO_POS[160 * w + 32 * i + 16 * gh + l]
    allw = np.concatenate([T1, T2, M.WQ_POS_W.astype(np.uint32), M.WQ_POS_I.astype(np.uint32), M.WO_POS.astype(np.uint32), slot, cp.ravel(), tw.ravel().view(np.uint32)])
    assert allw.size * 4 == TAB_BYTES, (allw.size * 4, TAB_BYTES)
    s = '.p2align 8\ntabs:\n'
    for i in range(0, allw.size, 8):
        s += '.long ' + ','.join('0x%x' % x for x in allw[i:i + 8]) + '\n'
    return s


def descriptor(name, k, nvgpr=None):
    mv, ma, ms = k.max_regs()
    acc = max(4, (mv + 3) // 4 * 4)
    nfv = acc + ma if ma > 0 else mv
    return f'''.p2align 6
.amdhsa_kernel {name}
  .amdhsa_next_free_vgpr {nfv}
  .amdhsa_next_free_sgpr {max(ms + 2, 8)}
  .amdhsa_accum_offset {acc}
  .amdhsa_group_segment_fixed_size 0
  .amdhsa_kernarg_size 72
  .amdhsa_user_sgpr_count 2
  .amdhsa_user_sgpr_kernarg_segment_ptr 1
  .amdhsa_system_sgpr_workgroup_id_x 1
.end_amdhsa_kernel
'''


def build(launches, bodies):
    hdr = open('cdna_kernels/' + NAME + '.s.ref').read().split('; Override')[0]
    s = hdr
    for (kn, g, b, lds) in launches:
        s += f'; @launch kernel={kn} grid=({g},1,1) block=({b},1,1) lds={lds}\n'
    s += '.amdgcn_target "amdgcn-amd-amdhsa--gfx950"\n.text\n'
    desc = ''
    for (k, names) in bodies:
        txt = k.finish()
        for n in names:
            txt = txt.replace(f'{n}:\n', f'.globl {n}\n.p2align 8\n.type {n},@function\n{n}:\n')
            desc += descriptor(n, k)
        s += txt
    s += 'text_end:\n.section .rodata,"a"\n.p2align 6\ndesc_start:\n' + desc + tables_asm()
    if BSS:
        s += f'.section .bss,"aw",@nobits\n.p2align 21\nwsbuf:\n.space {M.STAMP}\n'
    return s


if __name__ == '__main__':
    import gen_all
    gen_all.main()
```

```python
from gen import *

CM_IMG = 640 * 64 + 40 * 32
TBL = 83200
K2_LDS = TBL + 49152


def cmul(k, RE, IM, C, Sn, T0, T1, P, conj_tw, swap_out):
    n0, n1 = ('', '-') if conj_tw else ('-', '')
    for r in range(4):
        k(f'v_mul_f32 v{T0 + r}, v{RE + r}, v{C + r}')
        k(f'v_mul_f32 v{T1 + r}, v{IM + r}, v{C + r}')
    for r in range(4):
        k(f'v_fma_f32 v{T0 + r}, {n0}v{IM + r}, v{Sn + r}, v{T0 + r}')
        k(f'v_fma_f32 v{T1 + r}, {n1}v{RE + r}, v{Sn + r}, v{T1 + r}')
    for r in range(4):
        if swap_out:
            k(f'v_cvt_pk_bf16_f32 v{P + r}, v{T1 + r}, v{T0 + r}')
        else:
            k(f'v_cvt_pk_bf16_f32 v{P + r}, v{T0 + r}, v{T1 + r}')


def gen_k2():
    k = Kern()
    k('k2_kernel:')
    stamp_start(k, 1)
    k(f's_mov_b32 s40, {M.XH0}')
    k(f's_mov_b32 s41, {M.XH1}')
    k(f's_mov_b32 s42, {M.SSQ0}')
    srd_from_arg(k, 4, 64, M.WS_USED)
    k('s_cmp_lt_u32 s2, 160')
    k('s_cbranch_scc1 k2_col')
    k('s_cmp_lt_u32 s2, 224')
    k('s_cbranch_scc1 k2_b')
    k('s_cmp_lt_u32 s2, 244')
    k('s_cbranch_scc1 k2_c')
    k('s_endpgm')
    k('k5_kernel:')
    stamp_start(k, 4)
    k(f's_mov_b32 s40, {M.XH2}')
    k(f's_mov_b32 s41, {M.XH3}')
    k(f's_mov_b32 s42, {M.SSQ2}')
    srd_from_arg(k, 4, 64, M.WS_USED)
    k('s_cmp_lt_u32 s2, 160')
    k('s_cbranch_scc1 k2_col')
    k('s_cmp_lt_u32 s2, 176')
    k('s_cbranch_scc1 k2_i')
    if os.environ.get('PFWQ'):
        k('s_cmp_lt_u32 s2, 184')
        k('s_cbranch_scc1 k5_end')
        k('s_cmp_ge_u32 s2, 256')
        k('s_cbranch_scc1 k5_end')
        k('s_and_b32 s20, s2, 1')
        k('s_mul_i32 s20, s20, 1638400')
        k(f's_add_u32 s20, s20, {M.WQ}')
        k('s_sub_u32 s21, s2, 184')
        k('s_lshr_b32 s21, s21, 3')
        k(f's_mul_i32 s21, s21, {3 * 65536}')
        k('v_lshlrev_b32 v1, 7, v0')
        k('v_add_u32 v1, s21, v1')
        for i in range(3):
            k(f'v_min_u32 v2, {1638400 - 128}, v1')
            k(f'buffer_load_dword v{4 + i}, v2, {WS}, s20 offen')
            k('v_add_u32 v1, 0x10000, v1')
        k('k5_end: ; nojoinwait2')
    k('s_endpgm')
    k('k2_col:')
    k('v_and_b32 v1, 63, v0')
    k('v_and_b32 v2, 15, v0')
    k('v_bfe_u32 v3, v0, 4, 2')
    k('v_lshrrev_b32 v4, 6, v0')
    k('v_readfirstlane_b32 s20, v4')
    k('s_and_b32 s21, s20, 3')
    k('s_lshr_b32 s22, s20, 2')
    k('s_and_b32 s23, s2, 7')
    k('s_lshr_b32 s24, s2, 4')
    k('s_lshl_b32 s24, s24, 3')
    k('s_add_u32 s23, s23, s24')
    k('s_bfe_u32 s24, s2, 0x10003')
    k('v_lshlrev_b32 v7, 9, v3')
    k('v_lshl_add_u32 v7, v2, 2, v7')
    k('s_lshl_b32 s25, s21, 11')
    k('s_lshl_b32 s26, s22, 6')
    k('s_add_u32 s25, s25, s26')
    k('s_add_u32 s42, s42, s25')
    k(f's_mov_b32 s25, {M.TS}')
    k('v_mul_lo_u32 v6, v3, s25')
    k('v_lshl_add_u32 v6, v2, 4, v6')
    k('s_lshl_b32 s26, s23, 11')
    k('s_lshl_b32 s27, s24, 3')
    k('s_add_u32 s26, s26, s27')
    k(f's_mul_i32 s27, s21, {4 * M.TS}')
    k('s_add_u32 s26, s26, s27')
    k('s_lshl_b32 s27, s22, 8')
    k('s_add_u32 s26, s26, s27')
    k('s_add_u32 s27, s26, s41')
    k('s_add_u32 s26, s26, s40')
    k('s_lshl_b32 s28, s23, 2')
    k('s_lshl_b32 s29, s24, 1')
    k('s_add_u32 s28, s28, s29')
    k('s_add_u32 s28, s28, s22')
    k('s_lshl_b32 s28, s28, 13')
    k(f's_add_u32 s28, s28, {M.WT}')
    k('s_add_u32 s29, s28, 4096')
    k('s_lshl_b32 s30, s21, 4')
    k('v_add_u32 v28, s30, v2')
    k('v_lshl_add_u32 v29, v3, 6, v28')
    k('v_lshlrev_b32 v29, 4, v29')
    XR, SQ, WR = 8, 16, 20
    C1R, C1I, C2R, C2I, T1C, T2C = 32, 48, 64, 80, 96, 112
    XF, DA, DB, P, TA, TB, WFR, WFI = 128, 144, 160, 176, 184, 192, 200, 208
    srd_tab(k)
    k('v_lshlrev_b32 v4, 4, v1')
    k('s_lshl_b32 s36, s21, 13')
    k(f's_add_u32 s36, s36, {TAB_TW}')
    k('s_add_u32 s37, s36, 4096')
    loads = [f'buffer_load_dwordx2 {vr(XR + 2 * r, 2)}, v6, {WS}, s26 offen offset:{512 * r}' for r in range(4)]
    loads += [f'buffer_load_dword v{SQ + r}, v7, {WS}, s42 offen offset:{128 * r}' for r in range(4)]
    loads += [f'buffer_load_dwordx4 {vr(T1C + 4 * i, 4)}, v4, {TAB}, s36 offen offset:{1024 * i}' for i in range(4)]
    loads += [f'buffer_load_dwordx4 {vr(WR, 4)}, v29, {WS}, s28 offen', f'buffer_load_dwordx4 {vr(WR + 4, 4)}, v29, {WS}, s29 offen']
    loads += [f'buffer_load_dwordx4 {vr(T2C + 4 * i, 4)}, v4, {TAB}, s37 offen offset:{1024 * i}' for i in range(4)]
    c = []
    c.append('v_cvt_f32_u32 v30, v28')
    c.append(f'v_mul_f32 v30, {fhex(1 / 64)}, v30')
    c.append('v_cvt_f32_u32 v31, v3')
    c.append('v_mul_f32 v31, 4.0, v31')
    c.append(f'v_mul_f32 v{TA}, v31, v30')
    for r in range(1, 4):
        c.append(f'v_fmamk_f32 v{TA + r}, v30, {fhex(r)}, v{TA}')
    for r in range(4):
        c.append(f'v_cos_f32 v{TA + 4 + r}, v{TA + r}')
        c.append(f'v_sin_f32 v{TA + r}, v{TA + r}')
    c.append('s_mov_b32 s32, 0x80008000')
    c.append(f'v_and_b32 v{TB}, 1, v2')
    c.append(f'v_cmp_ne_u32 s[38:39], 0, v{TB}')
    c.append(f'v_mul_lo_u32 v{TB}, v{TB}, s32')
    c.append(f'v_bfe_u32 v{TB + 2}, v2, 1, 1')
    c.append(f'v_mul_lo_u32 v{TB + 2}, v{TB + 2}, s32')
    c.append(f'v_xor_b32 v{TB + 3}, v{TB + 2}, v{TB}')
    c.append(f'v_xor_b32 v{TB + 1}, s32, v{TB}')
    for r in range(4):
        c.append(f'v_cvt_pk_bf16_f32 v{C1R + r}, v{TA + 4 + r}, v{TA + r}')
        c.append(f'v_cvt_pk_bf16_f32 v{C1I + r}, -v{TA + r}, v{TA + 4 + r}')
    for r in range(4):
        c.append(f'v_cndmask_b32 v{C1R + 4 + r}, v{C1R + r}, v{C1I + r}, s[38:39]')
        c.append(f'v_cndmask_b32 v{C1I + 4 + r}, v{C1I + r}, v{C1R + r}, s[38:39]')
        c.append(f'v_xor_b32 v{C1R + 8 + r}, v{C1R + r}, v{TB}')
        c.append(f'v_xor_b32 v{C1I + 8 + r}, v{C1I + r}, v{TB}')
    for r in range(4):
        c.append(f'v_xor_b32 v{C1R + 12 + r}, v{C1R + 4 + r}, v{TB + 3}')
        c.append(f'v_xor_b32 v{C1I + 12 + r}, v{C1I + 4 + r}, v{TB + 2}')
        c.append(f'v_xor_b32 v{C1R + 4 + r}, v{C1R + 4 + r}, v{TB + 2}')
        c.append(f'v_xor_b32 v{C1I + 4 + r}, v{C1I + 4 + r}, v{TB + 3}')
    c.append('v_cvt_f32_u32 v30, v2')
    c.append(f'v_mul_f32 v30, {fhex(1 / 32)}, v30')
    c.append(f'v_mul_f32 v{TA}, v31, v30')
    for r in range(1, 4):
        c.append(f'v_fmamk_f32 v{TA + r}, v30, {fhex(r)}, v{TA}')
    for r in range(4):
        c.append(f'v_cos_f32 v{TA + 4 + r}, v{TA + r}')
        c.append(f'v_sin_f32 v{TA + r}, v{TA + r}')
    c.append('s_lshl_b32 s33, s20, 10')
    c.append('v_add_u32 v5, s33, v4')
    c.append('s_lshl_b32 s33, s22, 13')
    c.append('v_add_u32 v31, s33, v4')
    c.append('s_lshl_b32 s34, s21, 10')
    c.append('s_add_u32 s34, s34, s33')
    c.append('v_add_u32 v28, s34, v4')
    c.append('s_lshl_b32 s33, s22, 12')
    c.append('v_add_u32 v1, s33, v4')
    for r in range(4):
        c.append(f'v_cvt_pk_bf16_f32 v{C2R + r}, v{TA + 4 + r}, v{TA + r}')
        c.append(f'v_cvt_pk_bf16_f32 v{C2I + r}, -v{TA + r}, v{TA + 4 + r}')
    for r in range(4):
        for B in (C2R, C2I):
            c.append(f'v_xor_b32 v{B + 4 + r}, v{B + r}, v{TB}')
            if r % 2 == 0:
                c.append(f'v_mov_b32 v{B + 8 + r}, v{B + r}')
                c.append(f'v_xor_b32 v{B + 12 + r}, v{B + r}, v{TB}')
            else:
                c.append(f'v_xor_b32 v{B + 8 + r}, s32, v{B + r}')
                c.append(f'v_xor_b32 v{B + 12 + r}, v{B + r}, v{TB + 1}')
    c.append('s_cmp_eq_u32 s2, 0\ns_cselect_b32 s31, 0xffff, -1')
    c.append(f's_mov_b32 s35, {fhex(2.0 ** 22 / 640)}')
    c.append(f'v_mov_b32 v30, {fhex(1e-5 * 2.0 ** 22)}')
    NPRE = int(os.environ.get('K2PRE', '0'))
    for x in c[:NPRE]:
        k(x)
    c = c[NPRE:]
    for x in loads[:8]:
        k(x)
    stamp(k, 1)
    rest = loads[8:]
    step = len(c) // (len(rest) + 1)
    for i, x in enumerate(c):
        k(x)
        if i % step == step - 1 and rest:
            k(rest.pop(0))
    assert not rest
    stamp(k, 2)
    for r in range(4):
        k(f'v_fma_f32 v{SQ + r}, v{SQ + r}, s35, v30')
    for r in range(4):
        k(f'v_rsq_f32 v{SQ + r}, v{SQ + r}')
    for c in range(2):
        for r in range(4):
            k(f'v_lshlrev_b32 v{XF + 8 * c + r}, 16, v{XR + 2 * r + c}')
            k(f'v_and_b32 v{XF + 8 * c + 4 + r}, 0xffff0000, v{XR + 2 * r + c}')
        for h in range(2):
            k(f'v_pk_mul_f32 {vr(TA + 2 * h, 2)}, {vr(XF + 8 * c + 2 * h, 2)}, {vr(SQ + 2 * h, 2)}')
            k(f'v_pk_mul_f32 {vr(TA + 4 + 2 * h, 2)}, {vr(XF + 8 * c + 4 + 2 * h, 2)}, {vr(SQ + 2 * h, 2)}')
        for r in range(4):
            k(f'v_cvt_pk_bf16_f32 v{P + 4 * c + r}, v{TA + r}, v{TA + 4 + r}')
            if c == 0:
                k(f'v_and_b32 v{P + r}, s31, v{P + r}')
        k(f'ds_write_b128 v5, {vr(P + 4 * c, 4)} offset:{8192 * c}')
    k('s_waitcnt lgkmcnt(0)')
    k('s_barrier')
    stamp(k, 3)
    mf = 'v_mfma_f32_16x16x32_bf16'

    def weave(ms, vs):
        n = len(ms)
        for i, m in enumerate(ms):
            k(m)
            for x in vs[len(vs) * i // n:len(vs) * (i + 1) // n]:
                k(x)

    def cm(*a):
        L = []
        cmul(L.append, *a)
        return L

    for T in range(2):
        for t in range(4):
            k(f'ds_read_b128 {ar(16 * T + 4 * t, 4)}, v31 offset:{4096 * T + 1024 * t}')
    M1 = lambda T: [f'{mf} {vr(DA + o + 4 * T, 4)}, {ar(16 * T + 4 * t, 4)}, {vr(C + 4 * t, 4)}, {vr(DA + o + 4 * T, 4) if t else 0}'
                    for t in range(4) for (C, o) in ((C1R, 0), (C1I, 8))]
    M2 = lambda T, Tp: [f'{mf} {vr(DB + o + 4 * Tp, 4)}, {vr(C + 8 * Tp + 4 * T, 4)}, {vr(P + 4 * T, 4)}, {vr(DB + o + 4 * Tp, 4) if T else 0}'
                        for (C, o) in ((C2R, 0), (C2I, 8))]
    M3 = lambda Tp, Tm: [f'{mf} {vr(DA + o + 4 * Tm, 4)}, {vr(TB + 4 * Tp, 4)}, {vr(C + 8 * Tm + 4 * Tp, 4)}, {vr(DA + o + 4 * Tm, 4) if Tp else 0}'
                         for (C, o) in ((C2I, 0), (C2R, 8))]
    unp = []
    for i in range(8):
        unp += [f'v_lshlrev_b32 v{WFR + i}, 16, v{WR + i}', f'v_and_b32 v{WFI + i}, 0xffff0000, v{WR + i}']
    TC = 20
    weave(M1(0), [])
    weave(M1(1)[:3], unp)
    weave(M1(1)[3:], cm(DA, DA + 8, T1C, T1C + 4, TA, TA + 4, P, True, False))
    weave(M2(0, 0) + M2(0, 1), cm(DA + 4, DA + 12, T1C + 8, T1C + 12, TC, TC + 4, P + 4, True, False))
    weave(M2(1, 0) + M2(1, 1), [])
    stamp(k, 4)
    for x in cm(DB, DB + 8, WFR, WFI, TA, TA + 4, TB, False, True):
        k(x)
    weave(M3(0, 0) + M3(0, 1), cm(DB + 4, DB + 12, WFR + 4, WFI + 4, TC, TC + 4, TB + 4, False, True))
    weave(M3(1, 0) + M3(1, 1), [])
    for Tm in range(2):
        cmul(k, DA + 4 * Tm, DA + 8 + 4 * Tm, T2C + 8 * Tm, T2C + 8 * Tm + 4, TA if Tm == 0 else TC, (TA if Tm == 0 else TC) + 4, P + 4 * Tm, False, True)
        k(f'ds_write_b128 v28, {vr(P + 4 * Tm, 4)} offset:{16384 + 4096 * Tm}')
    k('s_waitcnt lgkmcnt(0)')
    k('s_barrier')
    stamp(k, 5)
    for t in range(4):
        for c in range(2):
            k(f'ds_read_b128 {ar(16 * c + 4 * t, 4)}, v1 offset:{16384 + 8192 * c + 1024 * t}')
    for t in range(4):
        for c in range(2):
            for (C, o) in ((C1I, 0), (C1R, 4)):
                d = vr(XF + 8 * c + o, 4)
                k(f'{mf} {d}, {vr(C + 4 * t, 4)}, {ar(16 * c + 4 * t, 4)}, {d}')
    stamp(k, 6)
    for r in range(4):
        for c in range(2):
            k(f'v_cvt_pk_bf16_f32 v{P + 2 * r + c}, v{XF + 8 * c + r}, v{XF + 8 * c + 4 + r}')
        k(f'v_bfi_b32 v{P + 2 * r}, s31, v{P + 2 * r}, v{XR + 2 * r}')
        k(f'buffer_store_dwordx2 {vr(P + 2 * r, 2)}, v6, {WS}, s27 offen offset:{512 * r}')
    endk(k, 1)

    codes = []
    idmask = []
    for st in range(5):
        src = [M.wq_col(0, st, 4 * p) for p in range(8)]
        for p in range(8):
            for x in range(4):
                assert M.wq_col(3, st, 4 * p + x) == (src[p][0], src[p][1] + x + 120)
        left = sorted(range(8), key=lambda p: src[p])
        runs = []
        while left:
            pa, pb = left[0], left[1]
            left = left[2:]
            assert src[pb] == (src[pa][0], src[pa][1] + 4), (st, src)
            kind, n = src[pa]
            seg, off = (3, n) if kind == 'i' else divmod(n, 640)
            runs.append((off // 4) | (seg << 4) | (pa << 8) | (pb << 12))
        codes.append((runs[0] | (runs[1] << 16), runs[2] | (runs[3] << 16)))
        idmask.append(sum(1 << p for p in range(8) if src[p][0] == 'i'))
    k('k2_i:')
    srd_from_arg(k, 8, 32, 640 * 3840)
    k('s_sub_u32 s23, s2, 160')
    k('s_mov_b32 s24, 4')
    k(f's_mov_b32 s36, {codes[4][0]}')
    k(f's_mov_b32 s37, {codes[4][1]}')
    k(f's_mov_b32 s44, {idmask[4]}')
    k('s_branch k2_t')
    k('k2_b:')
    srd_from_arg(k, 8, 32, 640 * 3840)
    k('s_and_b32 s23, s2, 1')
    k('s_lshl_b32 s23, s23, 3')
    k('s_and_b32 s24, s2, 6')
    k('s_add_u32 s23, s23, s24')
    k('s_sub_u32 s25, s2, 160')
    k('s_lshr_b32 s24, s25, 5')
    k('s_add_u32 s23, s23, s24')
    k('s_bfe_u32 s24, s25, 0x20003')
    k(f's_mov_b32 s36, {codes[0][0]}')
    k(f's_mov_b32 s37, {codes[0][1]}')
    for st in range(1, 4):
        k(f's_cmp_eq_u32 s24, {st}')
        k(f's_cselect_b32 s36, {codes[st][0]}, s36')
        k(f's_cselect_b32 s37, {codes[st][1]}, s37')
        if st == 2:
            k(f's_cselect_b32 s44, {idmask[2]}, 0')
    k('k2_t:')
    srd_tab(k)
    k('v_and_b32 v1, 63, v0')
    k('v_lshrrev_b32 v2, 6, v0')
    k('v_readfirstlane_b32 s21, v2')
    k('v_lshlrev_b32 v7, 4, v1')
    fft640_tables_dma(k, 'v7', 's21', TBL)
    k('v_lshrrev_b32 v3, 2, v0')
    k('v_and_b32 v4, 3, v0')
    k('v_lshlrev_b32 v5, 4, v4')
    k('v_lshrrev_b64 v[16:17], v5, s[36:37]')
    k('v_bfe_u32 v18, v16, 4, 2')
    k('v_and_b32 v19, 15, v16')
    k('v_mul_u32_u24 v20, 1280, v18')
    k('v_lshl_add_u32 v20, v19, 3, v20')
    k('v_mul_u32_u24 v21, 3840, v3')
    k('v_add_u32 v20, v20, v21')
    k('v_cmp_eq_u32 vcc, 3, v18')
    k('v_mov_b32 v21, 0x40000000')
    k('v_cndmask_b32 v20, v20, v21, vcc')
    k('s_mov_b64 s[38:39], vcc')
    k('s_mul_i32 s25, s23, 80')
    X = 140
    for i in range(5):
        k(f'buffer_load_dwordx4 {vr(X + 4 * i, 4)}, v20, {AUX}, s25 offen')
        if i < 4:
            k(f's_add_u32 s25, s25, {128 * 3840}')
    k('s_and_b32 s20, s21, 3')
    k('s_lshr_b32 s22, s21, 2')
    k('v_lshrrev_b32 v6, 4, v3')
    k('v_lshlrev_b32 v6, 5, v6')
    k('v_lshl_add_u32 v6, v3, 6, v6')
    k('v_bfe_u32 v5, v16, 12, 3')
    k('v_lshl_add_u32 v5, v5, 3, v6')
    k('v_bfe_u32 v17, v16, 8, 3')
    k('v_lshl_add_u32 v6, v17, 3, v6')
    k('s_mul_i32 s25, s23, 40')
    k('v_lshl_add_u32 v19, v19, 2, s25')
    k('v_and_b32 v21, 127, v19')
    k('v_sub_u32 v21, v3, v21')
    k('v_cmp_gt_u32 vcc, 8, v21')
    k('s_and_b64 s[38:39], s[38:39], vcc')
    k('v_cmp_gt_u32 vcc, 4, v21')
    k('v_cndmask_b32 v22, v5, v6, vcc')
    k('v_and_b32 v21, 3, v21')
    k('v_lshl_add_u32 v22, v21, 1, v22')
    k('v_lshrrev_b32 v19, 7, v19')
    k('v_mul_u32_u24 v19, 8448, v19')
    k('v_add_u32 v19, v19, v22')
    k('v_mov_b32 v22, 0x3f80')
    k('v_and_b32 v15, 15, v0')
    k('v_lshrrev_b32 v8, 4, v1')
    k('v_and_b32 v4, 3, v0')
    k('v_bfe_u32 v9, v0, 2, 2')
    k('s_lshl_b32 s26, s22, 2')
    k('s_lshr_b32 s26, s44, s26')
    k('v_lshrrev_b32 v24, v9, s26')
    k('v_and_b32 v24, 1, v24')
    k('v_cmp_eq_u32 s[40:41], 0, v24')
    k('s_cmp_eq_u32 s20, 0')
    k('s_cselect_b64 s[42:43], 0xffff, 0')
    k('s_and_b64 s[40:41], s[40:41], s[42:43]')
    k('v_lshl_add_u32 v10, v8, 2, v9')
    k('v_mul_u32_u24 v10, 1056, v10')
    k('v_lshl_add_u32 v10, v4, 3, v10')
    k('s_lshl_b32 s26, s20, 8')
    k('s_lshl_b32 s27, s22, 5')
    k('s_add_u32 s26, s26, s27')
    k('v_add_u32 v10, s26, v10')
    k('v_and_b32 v9, 1, v9')
    k('v_lshl_add_u32 v11, v8, 1, v9')
    k('v_mul_u32_u24 v11, 1056, v11')
    k('v_lshl_add_u32 v11, v4, 3, v11')
    k(f's_add_u32 s26, s26, {32 * 1056}')
    k('v_add_u32 v11, s26, v11')
    k(f's_mul_i32 s27, s22, {E_BYTES}')
    k(f's_add_u32 s27, s27, {CM_IMG}')
    k('v_mul_u32_u24 v12, 5120, v8')
    k('v_lshl_add_u32 v12, v15, 4, v12')
    k('s_lshl_b32 s26, s20, 8')
    k('s_add_u32 s26, s26, s27')
    k('v_add_u32 v12, s26, v12')
    k('s_mul_i32 s26, s20, 5120')
    k('s_add_u32 s26, s26, s27')
    k('v_add_u32 v13, s26, v7')
    k('v_lshrrev_b32 v9, 1, v8')
    k('v_mul_u32_u24 v9, 5120, v9')
    k('v_and_b32 v14, 1, v8')
    k('v_lshl_add_u32 v9, v14, 9, v9')
    k('v_lshl_add_u32 v14, v15, 4, v9')
    k('s_mul_i32 s25, s23, 204800')
    k('s_lshl_b32 s24, s24, 10')
    k('s_add_u32 s24, s24, s25')
    k('s_lshl_b32 s25, s22, 8')
    k('s_add_u32 s24, s24, s25')
    k(f's_mul_i32 s25, s20, {5 * 10240}')
    k('s_add_u32 s24, s24, s25')
    k(f's_add_u32 s24, s24, {M.WQ}')
    k('v_mov_b32 v38, 0')
    fft640_zero_b1(k, 2)
    for i in range(5):
        k(f'ds_write_b64 v6, {vr(X + 4 * i, 2)} offset:{8448 * i}')
        k(f'ds_write_b64 v5, {vr(X + 4 * i + 2, 2)} offset:{8448 * i}')
    k('s_mov_b64 exec, s[38:39]')
    k('ds_write_b16 v19, v22')
    k('s_mov_b64 exec, -1')
    k('s_waitcnt vmcnt(0) lgkmcnt(0)')
    k('s_barrier')
    fft640_tables_read(k, 'v7', 's20', TBL, 'v36', 'v37')
    for q in range(4):
        k(f'ds_read_b64_tr_b16 {vr(B0 + 4 * q, 2)}, v10 offset:{64 * q}')
        k(f'ds_read_b64_tr_b16 {vr(B0 + 4 * q + 2, 2)}, v10 offset:{64 * q + 16 * 1056}')
        k(f'ds_read_b64_tr_b16 {vr(B1 + 4 * q, 2)}, v11 offset:{64 * q}')
    fft640_stage1(k, 'v12', lambda: fft640_tables_read2(k, 'v37'))
    fft640_stage2(k, 'v13', False)
    k(f'v_cndmask_b32 v{D2 + 1}, v{D2 + 1}, v38, s[40:41]')
    fft640_store_normal(k, 'v14', 's24', 10240, os.environ.get('BST', ' sc1'))
    endk(k, 1)

    k('k2_c:')
    srd_from_arg(k, 8, 40, 640 * 1280)
    srd_tab(k)
    k('v_and_b32 v1, 63, v0')
    k('v_lshrrev_b32 v2, 6, v0')
    k('v_readfirstlane_b32 s21, v2')
    k('v_lshlrev_b32 v7, 4, v1')
    fft640_tables_dma(k, 'v7', 's21', TBL)
    k('s_and_b32 s20, s21, 3')
    k('s_lshr_b32 s22, s21, 2')
    k('s_sub_u32 s23, s2, 224')
    k('s_mul_i32 s24, s23, 52')
    k('s_lshr_b32 s24, s24, 8')
    k('s_mul_i32 s25, s24, 5')
    k('s_sub_u32 s25, s23, s25')
    k('v_bfe_u32 v3, v0, 4, 4')
    k('v_and_b32 v4, 15, v0')
    k('v_and_b32 v5, 7, v3')
    k('s_lshl_b32 s25, s25, 3')
    k('v_add_u32 v5, s25, v5')
    k('v_mul_u32_u24 v6, 52, v5')
    k('v_lshrrev_b32 v6, 8, v6')
    k('v_mul_u32_u24 v6, 15, v6')
    k('v_add_u32 v5, v5, v6')
    k('v_lshrrev_b32 v6, 3, v3')
    k('v_mul_u32_u24 v6, 5, v6')
    k('v_add_u32 v5, v5, v6')
    k('s_mul_i32 s24, s24, 160')
    k('s_mul_i32 s25, s22, 10')
    k('s_add_u32 s24, s24, s25')
    k('v_add_u32 v5, s24, v5')
    k('v_mul_u32_u24 v5, 1280, v5')
    k('v_lshl_add_u32 v5, v4, 4, v5')
    X = 140
    for i in range(5):
        k(f'buffer_load_dwordx4 {vr(X + 4 * i, 4)}, v5, {AUX}, 0 offen offset:{256 * i}')
    k(f's_mul_i32 s27, s22, {X_IMG + E_BYTES}')
    k(f'v_mul_u32_u24 v6, {XP}, v3')
    k('v_lshl_add_u32 v6, v4, 4, v6')
    k('v_add_u32 v6, s27, v6')
    k('v_lshrrev_b32 v8, 4, v1')
    k('v_lshrrev_b32 v9, 1, v8')
    k('v_lshl_add_u32 v9, v9, 4, v4')
    k('v_lshlrev_b32 v9, 6, v9')
    k('s_lshl_b32 s26, s20, 11')
    k(f's_add_u32 s26, s26, {TAB_CP}')
    POS = 160
    for i in range(4):
        k(f'buffer_load_dwordx4 {vr(POS + 4 * i, 4)}, v9, {TAB}, s26 offen offset:{16 * i}')
    k(f'v_mul_u32_u24 v9, {XP}, v4')
    k('s_lshl_b32 s26, s20, 3')
    k('s_add_u32 s26, s26, s27')
    k('v_add_u32 v9, s26, v9')
    k('v_lshl_add_u32 v10, v8, 7, v9')
    k('v_lshl_add_u32 v11, v8, 6, v9')
    k('v_add_u32 v11, 1024, v11')
    k('v_mul_u32_u24 v12, 5120, v8')
    k('v_lshl_add_u32 v12, v4, 4, v12')
    k('s_lshl_b32 s26, s20, 8')
    k('s_add_u32 s26, s26, s27')
    k(f's_add_u32 s26, s26, {X_IMG}')
    k('v_add_u32 v12, s26, v12')
    k('s_mul_i32 s26, s20, 5120')
    k('s_add_u32 s26, s26, s27')
    k(f's_add_u32 s26, s26, {X_IMG}')
    k('v_add_u32 v13, s26, v7')
    k('v_and_b32 v14, 1, v8')
    k('v_bfe_u32 v15, v0, 2, 2')
    k('v_lshl_add_u32 v15, v14, 3, v15')
    k(f'v_mul_u32_u24 v15, {XP}, v15')
    k('v_and_b32 v36, 3, v0')
    k('v_lshl_add_u32 v15, v36, 3, v15')
    k('v_lshrrev_b32 v36, 1, v8')
    k('v_lshl_add_u32 v15, v36, 5, v15')
    k('s_mul_i32 s26, s20, 320')
    k('s_add_u32 s26, s26, s27')
    k('v_add_u32 v15, s26, v15')
    k('s_mul_i32 s24, s23, 5120')
    k('s_lshl_b32 s25, s22, 9')
    k('s_add_u32 s24, s24, s25')
    k(f's_add_u32 s25, s24, {M.WOT}')
    k(f's_add_u32 s24, s24, {M.WOF}')
    k('v_lshlrev_b32 v37, 8, v14')
    k('v_lshlrev_b32 v38, 8, v36')
    k('v_lshl_add_u32 v38, v14, 3, v38')
    fft640_zero_b1(k, 1)
    for i in range(5):
        k(f'ds_write_b128 v6, {vr(X + 4 * i, 4)} offset:{256 * i}')
    k('s_waitcnt vmcnt(4) lgkmcnt(0)')
    k('s_barrier')
    fft640_tables_read(k, 'v7', 's20', TBL, 'v36', 'v39')
    fft640_core_from_rows(k, 'v10', 'v11')
    for i in range(5):
        k(f'ds_read_b64_tr_b16 {vr(X + 4 * i, 2)}, v15 offset:{64 * i}')
        k(f'ds_read_b64_tr_b16 {vr(X + 4 * i + 2, 2)}, v15 offset:{64 * i + 4 * XP}')

    def mid():
        fft640_tables_read2(k, 'v39')
        for i in range(5):
            k(f'v_add_u32 v{POS + 10 + i}, v{POS + 10 + i}, v37')
            k(f'buffer_store_dwordx4 {vr(X + 4 * i, 4)}, v{POS + 10 + i}, {WS}, s25 offen sc1')
    fft640_stage1(k, 'v12', mid)
    fft640_stage2(k, 'v13', True)
    for i in range(5):
        for t in range(2):
            p = PK + 4 * i + 2 * t
            k(f'v_cvt_pk_bf16_f32 v{p}, v{D2 + 8 * i + 4 * t}, v{D2 + 8 * i + 4 * t + 1}')
            k(f'v_cvt_pk_bf16_f32 v{p + 1}, v{D2 + 8 * i + 4 * t + 2}, v{D2 + 8 * i + 4 * t + 3}')
            k(f'v_add_u32 v{POS + 2 * i + t}, v{POS + 2 * i + t}, v38')
            k(f'buffer_store_dwordx2 {vr(p, 2)}, v{POS + 2 * i + t}, {WS}, s24 offen')
    endk(k, 1)
    return k
```

```python
from gen import *
import os
X = set(os.environ.get('XK3', '').split(','))

ROWMAP = os.environ.get('ROWMAP', '0') == '1'
LOG2E = math.log2(math.e)
LN2 = math.log(2.0)
K3_BLOCK = 512
RG = 40960
H2 = 3 * RG
RB = H2 + 16384
FL = RB + 1536
K3_LDS = RB + 2048
K6_LDS = K3_LDS


class Stream:
    def __init__(self):
        self.l = []

    def __call__(self, t):
        self.l.append(t)


def gen_k3(is6):
    k = Kern()
    nm = 'k6' if is6 else 'k3'
    NT = 5 if is6 else 4
    NA = 2
    XIN = M.XH3 if is6 else M.XH1
    PQ = M.PQ2 if is6 else M.PQ1
    KVS = M.KVS2 if is6 else M.KVS1
    mf = 'v_mfma_f32_32x32x16_bf16'
    m4 = 'v_mfma_f32_4x4x4_16b_bf16'
    region = {0: 0, 1: RG, 2: 2 * RG, 3: 0, 4: 2 * RG}
    uid = [0]
    k(f'{nm}_kernel:')
    stamp_start(k, 5 if is6 else 2)
    k('s_cmp_ge_u32 s2, 256')
    k(f's_cbranch_scc1 {nm}_exit')
    srd_from_arg(k, 4, 64, M.WS_USED)
    k('v_lshrrev_b32 v1, 6, v0')
    k('v_readfirstlane_b32 s19, v1')
    k('v_and_b32 v1, 63, v0')
    k('v_lshlrev_b32 v1, 4, v1')
    if ROWMAP:
        k('s_and_b32 s21, s2, 7')
        k('s_lshl_b32 s21, s21, 1')
        k('s_lshr_b32 s22, s2, 7')
        k('s_add_u32 s21, s21, s22')
        k('s_bfe_u32 s22, s2, 0x40003')
    else:
        k('s_bfe_u32 s21, s2, 0x20001')
        k('s_lshl_b32 s21, s21, 2')
        k('s_lshr_b32 s22, s2, 6')
        k('s_add_u32 s21, s21, s22')
        k('s_and_b32 s22, s2, 1')
        k('s_lshl_b32 s22, s22, 3')
        k('s_bfe_u32 s23, s2, 0x30003')
        k('s_add_u32 s22, s22, s23')
    k('s_and_b32 s20, s19, 3')
    k(f's_mul_i32 s23, s21, {M.TS}')
    k('s_mul_i32 s43, s22, 10240')
    k('s_add_u32 s43, s43, s23')
    k('s_mul_i32 s28, s22, 204800')
    k('s_mul_i32 s27, s20, 5120')
    k('s_add_u32 s28, s28, s27')
    k(f's_add_u32 s28, s28, {M.WQ}')
    k('s_lshl_b32 s29, s20, 10')
    k('s_lshr_b32 s24, s19, 2')
    k(f's_mul_i32 s25, s24, {RG}')
    k('s_add_u32 s25, s25, s29')
    k('s_lshl_b32 s24, s24, 10')
    k('s_add_u32 s24, s24, s28')
    for i in range(3):
        k(f's_add_u32 m0, s25, {4096 * i}')
        k(f'buffer_load_dwordx4 v1, {WS}, s24 offen lds')
        if i < 2:
            k('s_add_u32 s24, s24, 20480')
    k('s_cmp_ge_u32 s19, 4')
    k(f's_cbranch_scc1 {nm}_h')
    ACC, BF, A0, SQ = 8, 72, 96, 56
    S = lambda s: ACC + 16 * s
    k('v_and_b32 v2, 31, v0')
    k('v_bfe_u32 v3, v0, 5, 1')
    k('s_lshl_b32 s24, s20, 9')
    k('v_lshl_add_u32 v7, v2, 4, s24')
    k('v_lshl_add_u32 v7, v3, 11, v7')
    k('v_add_u32 v5, 4096, v7')
    k(f's_add_u32 s25, s23, {XIN}')
    k('s_add_u32 s28, s28, 3072')
    issued = []
    ops = [('A', 0, i) for i in range(40)]
    for t in range(3, NT):
        ops += [('P', t, i) for i in range(10)]
    gate = {'t': 2}

    def issue(n=1):
        for _ in range(n):
            if not ops or (ops[0][0] == 'P' and ops[0][1] > gate['t']):
                return
            op = ops.pop(0)
            kind, c, i = op
            if kind == 'A':
                k(f'buffer_load_dwordx4 {vr(A0 + 4 * i, 4)}, {"v7" if i % 2 == 0 else "v5"}, {WS}, s25 offen')
                if i % 2:
                    k('s_add_u32 s25, s25, 8192')
            else:
                k(f's_add_u32 m0, s29, {region[c] + 4096 * i}')
                k(f'buffer_load_dwordx4 v1, {WS}, s28 offen lds')
                k(f's_add_u32 s28, s28, {20480 if i < 9 else 1024 - 9 * 20480}')
            issued.append(op)

    issue(4)
    k('s_mul_i32 s27, s20, 384')
    k(f's_add_u32 s27, s27, {RB}')
    k('v_cmp_eq_u32 s[30:31], 0, v3')
    k('v_mov_b32 v44, -1')
    k('v_mov_b32 v45, 0xffff')
    k('v_cndmask_b32 v44, v44, v45, s[30:31]')
    for i, b in enumerate((0, 1, 3, 4)):
        k(f'v_and_b32 v45, {1 << b}, v2')
        k(f'v_cmp_ne_u32 s[{32 + 2 * i}:{33 + 2 * i}], 0, v45')
    k('v_bfe_u32 v45, v2, 2, 1')
    k('v_cmp_eq_u32 s[40:41], v45, v3')
    k('v_add_u32 v3, 0x10000, v1')
    k('s_lshl_b32 s24, s20, 13')
    k(f's_add_u32 s24, s24, {RG}')
    k('v_add_u32 v6, s24, v1')
    k('s_lshl_b32 s24, s20, 12')
    k(f's_add_u32 s24, s24, {H2}')
    k('v_add_u32 v4, s24, v1')
    k('s_lshl_b32 s24, s20, 2')
    k(f's_add_u32 s24, s24, {FL}')
    k('v_mov_b32 v2, s24')
    NB, AH = 6, 4

    def seq(n):
        return (n % 2, n // 2) if n < 80 else (n // 40, n % 40)

    def read_b(n):
        t, ks = seq(n)
        off = region[t] + ks * 1024
        a, o = ('v1', off) if off < 65536 else ('v3', off - 65536)
        k(f'ds_read_b128 {vr(BF + 4 * (n % NB), 4)}, {a} offset:{o}')

    tmp = S(1)

    def g_count(off):
        k('s_mov_b64 exec, 1')
        k(f'ds_add_u32 v{tmp + 2}, v{tmp + 3} offset:{off}')
        k('s_mov_b64 exec, -1')

    def g_poll(off):
        k(f'ds_read_b32 v{tmp + 1}, v{tmp + 2} offset:{off}')

    def g_check(off, val):
        uid[0] += 1
        u = f'{nm}_g{uid[0]}'
        k(f'v_readfirstlane_b32 s26, v{tmp + 1}')
        k(f's_cmp_ge_u32 s26, {val}')
        k(f's_cbranch_scc1 {u}_ok')
        k(f'{u}_sp: ; loop')
        k(f'ds_read_b32 v{tmp + 1}, v{tmp + 2} offset:{off}')
        k('s_waitcnt lgkmcnt(0)')
        k(f'v_readfirstlane_b32 s26, v{tmp + 1}')
        k(f's_cmp_ge_u32 s26, {val}')
        k(f's_cbranch_scc0 {u}_sp')
        k(f'{u}_ok: ; keepstate')

    slot = {0: 0, 1: 1, 2: 2, 3: 3, 4: 0}
    e = Stream()
    for q in range(4):
        e(f'ds_write_b128 v6, {vr(S(0) + 4 * q, 4)} offset:{1024 * q}')
    if 'gram' in X:
        step = 1
        for i in range(4):
            for j in range(0, 16, 2 * step):
                e(f'v_cndmask_b32 v{SQ + j}, v{SQ + j}, v{SQ + j + step}, s[{32 + 2 * i}:{33 + 2 * i}]')
            step *= 2
        e(f'v_cndmask_b32 v{SQ}, 0, v{SQ}, s[40:41]')
    else:
        for j in range(0, 8, 2):
            e(f'v_cndmask_b32 v{SQ + j}, v{SQ + j}, v{SQ + j + 1}, s[32:33]')
        for j in (0, 4):
            e(f'v_cndmask_b32 v{SQ + j}, v{SQ + j}, v{SQ + j + 2}, s[34:35]')
        e(f'v_add_f32 v{SQ}, v{SQ}, v{SQ + 4}')
    e('v_lshrrev_b32 v64, 2, v1')
    e('v_add_u32 v64, s27, v64')
    e(f'v_mov_b32 v{SQ + 1}, v{SQ}')
    e(f'v_mov_b32 v{SQ + 2}, {fhex(1e-5 * LN2 * LN2)}')
    e(f'ds_write_b128 v6, {vr(S(1), 4)} offset:4096')
    e(f'v_permlane32_swap_b32 v{SQ}, v{SQ + 1}')
    e(f'v_add_f32 v{SQ}, v{SQ}, v{SQ + 1}')
    e(f'v_fmamk_f32 v{SQ}, v{SQ}, {fhex(LN2 * LN2 / 640)}, v{SQ + 2}')
    e(f'v_rsq_f32 v5, v{SQ}')
    e(f'ds_write_b128 v6, {vr(S(1) + 4, 4)} offset:5120')
    e(f'v_mul_f32 v{SQ + 1}, {fhex(LN2)}, v5')
    e(f'v_cndmask_b32 v{SQ + 1}, v{SQ + 1}, v5, s[30:31]')
    e(f'ds_write_b32 v64, v{SQ + 1}')
    e('v_mov_b32 v0, 1')
    e('ds_write_b32 v2, v0 offset:16')
    e(f'ds_write_b128 v6, {vr(S(1) + 8, 4)} offset:6144')
    e(f'ds_write_b128 v6, {vr(S(1) + 12, 4)} offset:7168')
    e(f'v_mov_b32 v{SQ + 3}, 2')
    e(f'ds_write_b32 v2, v{SQ + 3} offset:16')
    e(f'v_mov_b32 v{tmp + 2}, {FL}')
    e(f'v_mov_b32 v{tmp + 3}, 1')
    e('AT122')
    for q in range(4):
        e(f'ds_write_b128 v4, {vr(S(2) + 4 * q, 4)} offset:{1024 * q}')
    e('v_mov_b32 v0, 3')
    e('ds_write_b32 v2, v0 offset:16')
    e('AT162')
    TM, TE = S(3), S(2)
    e(f'v_mov_b32 v6, {fhex(1e-6 * LOG2E)}')
    e(f's_mov_b32 s39, {fhex(LN2)}')
    e(f's_add_u32 s44, s43, {PQ}')
    for r in range(16):
        e(f'v_mul_f32 v{TM + r}, v{TM + r}, v5')
        e(f'v_min_f32 v{TE + r}, 0, v{TM + r}')
        e(f'v_exp_f32 v{TE + r}, v{TE + r}')
        e(f'v_max_f32 v{TM + r}, v6, v{TM + r}')
        if r >= 1:
            e(f'v_fma_f32 v{TM + r - 1}, v{TM + r - 1}, s39, v{TE + r - 1}')
        if r >= 2 and r % 2 == 0:
            e(f'v_cvt_pk_bf16_f32 v{TE + r // 2 - 1}, v{TM + r - 2}, v{TM + r - 1}')
        if r == 8:
            e(f'buffer_store_dwordx4 {vr(TE, 4)}, v7, {WS}, s44 offen sc1')
            e('s_add_u32 s44, s44, 4096')
    e(f'v_fma_f32 v{TM + 15}, v{TM + 15}, s39, v{TE + 15}')
    e(f'v_cvt_pk_bf16_f32 v{TE + 7}, v{TM + 14}, v{TM + 15}')
    e(f'buffer_store_dwordx4 {vr(TE + 4, 4)}, v7, {WS}, s44 offen sc1')
    q = {'n': 0}

    def drain(st, n):
        while n > 0 and st.l:
            if st.l[0].startswith('AT'):
                if q['n'] < int(st.l[0][2:]) and n < 1000:
                    return
                st.l.pop(0)
                continue
            t = st.l.pop(0)
            k(t)
            if t.startswith('buffer_'):
                issued.append(('S', 0, 0))
            n -= 1

    def landed(t, off):
        last = max(i for i, x in enumerate(issued) if x[0] == 'P' and x[1] == t)
        assert not any(x[0] == 'P' and x[1] == t for x in ops)
        k(f's_waitcnt vmcnt({len(issued) - 1 - last})')
        g_count(off)

    NP = 40 * NT
    issue(4)
    k('s_waitcnt vmcnt(8)')
    k('s_barrier')
    stamp(k, 1)
    for n in range(AH):
        read_b(n)
    for n in range(NP):
        t, ks = seq(n)
        nn = n + AH
        q['n'] = n
        if nn in (24, 48):
            k('s_barrier')
        if nn == 80:
            k('s_waitcnt lgkmcnt(0)')
            k('s_barrier')
            gate['t'] = 3
        for tt in range(3, NT):
            base = 40 * tt
            if nn == base - 6:
                landed(tt, 64 + 8 * (tt - 3))
            if nn == base - 3:
                g_poll(64 + 8 * (tt - 3))
            if nn == base:
                g_check(64 + 8 * (tt - 3), 4)
        if nn == 93:
            g_poll(76)
        if nn == 96:
            g_check(76, 4)
        if nn == 104:
            g_poll(80)
        if nn == 108:
            g_check(80, 4)
        if is6:
            if nn == 122:
                k('s_waitcnt lgkmcnt(2)')
                g_count(68)
            if nn == 126:
                g_poll(68)
            if nn == 130:
                g_check(68, 4)
                gate['t'] = 4
        if nn < NP:
            read_b(nn)
        d = vr(S(slot[t]), 16)
        B, A = vr(BF + 4 * (n % NB), 4), vr(A0 + 4 * ks, 4)
        x, y = (A, B) if t <= 2 else (B, A)
        k(f'{mf} {d}, {x}, {y}, {d if ks else 0}')
        if n < 80:
            if n % 2 == 0 or n < 8:
                issue(1)
            if 'gram' in X:
                if t == 0:
                    r = vr(A0 + 4 * ks, 4)
                    sq = vr(SQ, 16)
                    r2 = r
                    if n == 0:
                        k(f'v_and_b32 v40, v{A0}, v44')
                        for x in range(1, 4):
                            k(f'v_mov_b32 v{40 + x}, v{A0 + x}')
                        r2 = 'v[40:43]'
                    k(f'{mf} {sq}, {r}, {r2}, {sq if ks else 0}')
            else:
                r = vr(A0 + 4 * ks + 2 * t, 2)
                sq = vr(SQ + 4 * t, 4)
                if n == 0:
                    k(f'v_and_b32 v40, v{A0}, v44')
                    k(f'v_mov_b32 v41, v{A0 + 1}')
                    r = 'v[40:41]'
                k(f'{m4} {sq}, {r}, {r}, {sq if ks else 0}')
            if n == 40:
                stamp(k, 2)
        else:
            if n >= 90 or n % 2 == 0:
                issue(1)
            if ks == 0:
                stamp(k, 1 + t)
            if n >= 81:
                drain(e, 8 if n < 88 else 3)
    assert not ops
    if not is6:
        stamp(k, 5)
    drain(e, 10000)
    if is6:
        k(f's_add_u32 s47, s43, {M.X3}')
        for gq in range(2):
            for x in range(4):
                r = 8 * gq + 2 * x
                k(f'v_cvt_pk_bf16_f32 v{BF + 4 * gq + x}, v{S(0) + r}, v{S(0) + r + 1}')
            k(f'buffer_store_dwordx4 {vr(BF + 4 * gq, 4)}, v7, {WS}, s47 offen sc1')
            k('s_add_u32 s47, s47, 4096')
    stamp(k, 6)
    if DIAG or HDIAG:
        k('s_lshl_b32 s19, s19, 6')
        k('v_mov_b32 v0, s19')
    endk(k, 2)

    k(f'{nm}_h:')
    k('s_add_u32 s26, s28, 2048')
    k(f's_add_u32 s28, s28, {3 * 20480}')
    hiss = [('Q', 0), ('Q', 1), ('Q', 2)]

    def h_q(i):
        for c in range(2):
            k(f's_add_u32 m0, s29, {c * (RG - 1024) + 4096 * i}')
            k(f'buffer_load_dwordx4 v1, {WS}, s28 offen offset:{1024 * c} lds')
            hiss.append(('Q', i))
        k('s_add_u32 s28, s28, 20480')

    def h_p(i):
        k(f's_add_u32 m0, s29, {2 * RG + 4096 * i}')
        k(f'buffer_load_dwordx4 v1, {WS}, s26 offen lds')
        k('s_add_u32 s26, s26, 20480')
        hiss.append(('P', i))

    def h_bar(pred):
        last = max(i for i, t in enumerate(hiss) if pred(t))
        k(f's_waitcnt vmcnt({len(hiss) - 1 - last}) lgkmcnt(0)')
        k('s_barrier')

    def count(off):
        k('s_mov_b64 exec, 1')
        k(f'ds_add_u32 v20, v21 offset:{off}')
        k('s_mov_b64 exec, -1')

    def spin(vaddr, off, val):
        uid[0] += 1
        u = f'{nm}_h{uid[0]}'
        k(f'{u}: ; loop')
        if 'slp' in X:
            k('s_sleep 1')
        k(f'ds_read_b32 v22, {vaddr} offset:{off}')
        k('s_waitcnt lgkmcnt(0)')
        k('v_readfirstlane_b32 s68, v22')
        k(f's_cmp_ge_u32 s68, {val}')
        k(f's_cbranch_scc0 {u}')

    k('v_and_b32 v9, 31, v0')
    k('v_lshlrev_b32 v9, 2, v9')
    k(f'v_add_u32 v9, {FL}, v9')
    k('v_mov_b32 v8, 0')
    k('ds_write_b32 v9, v8')
    k(f'v_mov_b32 v20, {FL}')
    k('v_mov_b32 v21, 1')
    stamp(k, 1)
    su = Stream()
    su('v_and_b32 v2, 31, v0')
    su('v_bfe_u32 v3, v0, 5, 1')
    su('s_lshl_b32 s30, s20, 9')
    su('v_lshl_add_u32 v4, v2, 4, s30')
    ID, HA, RR, RS2, TM, TE, PP, MA, MB, DKV, DT, ST = 32, 40, 88, 104, 120, 136, 152, 176, 184, 192, 224, 120
    su('v_lshlrev_b32 v11, 2, v3')
    su('v_sub_u32 v11, v2, v11')
    su('v_and_b32 v12, 1, v11')
    su('v_lshlrev_b32 v12, 4, v12')
    su('v_mov_b32 v13, 0x3f80')
    su('v_lshlrev_b32 v12, v12, v13')
    su('v_or_b32 v11, 1, v11')
    for s in range(2):
        for q in range(4):
            K0 = 16 * s + 8 * (q // 2) + 2 * (q % 2)
            su(f'v_cmp_eq_u32 vcc, {K0 + 1}, v11\nv_cndmask_b32 v{ID + 4 * s + q}, 0, v12, vcc')
    su('v_cmp_gt_u32 s[30:31], 8, v2')
    su('v_cmp_gt_u32 s[32:33], 16, v2')
    su('v_cmp_eq_u32 s[34:35], 4, v2')
    su('v_cmp_eq_u32 s[36:37], 11, v2')
    su('s_or_b64 s[34:35], s[34:35], s[36:37]')
    su('v_subrev_u32 v12, 8, v2')
    su('v_cmp_gt_u32 s[36:37], 16, v12')
    su('v_mov_b32 v13, 0xff800000')
    su(f'v_mov_b32 v14, {fhex(1e-6 * LOG2E)}')
    su('v_cndmask_b32 v15, v14, v13, s[36:37]')
    su('v_cndmask_b32 v13, 0, v13, s[36:37]')
    su(f's_mov_b32 s39, {fhex(LN2)}')
    su('v_mov_b32 v11, 0x3f803f80')
    su('s_mul_i32 s38, s20, 384')
    su(f's_add_u32 s38, s38, {RB}')
    su('v_mov_b32 v9, 1.0')
    su('v_lshl_add_u32 v17, v2, 2, s38')
    su('ds_write_b32 v17, v9 offset:256')
    su('v_lshl_add_u32 v17, v3, 4, s38')
    su('v_subrev_u32 v9, 4, v2')
    su('v_cmp_gt_u32 vcc, 8, v9\nv_add_u32 v9, 128, v17\nv_cndmask_b32 v18, v17, v9, vcc')
    su('s_lshl_b32 s38, s20, 12')
    su(f's_add_u32 s38, s38, {H2}')
    su('v_add_u32 v16, s38, v1')
    su('s_lshl_b32 s38, s20, 13')
    su(f's_add_u32 s38, s38, {RG}')
    su('v_add_u32 v6, s38, v1')
    su('v_lshrrev_b32 v9, 1, v1')
    su('v_add_u32 v7, s38, v9')
    su('s_mul_i32 s38, s20, 1536')
    su(f's_add_u32 s38, s38, {RG}')
    su('v_add_u32 v12, s38, v9')
    su('s_lshl_b32 s38, s20, 2')
    su(f's_add_u32 s38, s38, {FL}')
    su('v_mov_b32 v19, s38')
    su('s_lshr_b32 s40, s20, 1')
    su('s_and_b32 s41, s20, 1')
    su('s_mul_i32 s42, s40, 12')
    su('v_add_u32 v10, s42, v2')
    su('v_and_b32 v10, 31, v10')
    su('v_cmp_gt_u32 s[50:51], 20, v10')
    su('s_lshl_b32 s42, s40, 2')
    su('v_subrev_u32 v10, s42, v10')
    su('v_cmp_gt_i32 vcc, 0, v10\nv_add_u32 v9, 24, v10\nv_cndmask_b32 v10, v10, v9, vcc')
    su('v_lshlrev_b32 v10, 2, v10')
    su('v_mul_u32_u24 v9, 384, v3')
    su('v_add_u32 v10, v10, v9')
    su('v_lshl_add_u32 v5, v3, 3, v4')
    su('v_cmp_eq_u32 s[52:53], s40, v3')
    su('s_and_b64 s[52:53], s[52:53], s[50:51]')
    su('s_cmp_eq_u32 s41, 0\ns_cselect_b64 s[52:53], s[52:53], s[50:51]')
    su('s_cmp_eq_u32 s40, 0\ns_cselect_b64 s[54:55], s[50:51], s[52:53]\ns_cselect_b64 s[56:57], s[52:53], s[50:51]')
    row0 = lambda rho: 8 * (rho // 4) + rho % 4
    srow = [[(row0(i) if i < 4 else row0(i) - 3) for i in range(0, 6)], [row0(i) - 3 for i in range(6, 12)],
            [row0(i) - 11 + 21 for i in range(4, 10)], [row0(i) - 11 + 21 for i in range(10, 16)]]
    su('s_mul_i32 s45, s22, 4032')
    su(f's_add_u32 s45, s45, {KVS}')
    if 'rep' in X:
        su('s_mul_i32 s45, s22, 4032')
        su('s_lshl_b32 s46, s21, 16')
        su('s_add_u32 s45, s45, s46')
        su(f's_add_u32 s45, s45, {M.STAMP}')
    su('s_lshl_b32 s46, s20, 3')
    for i in range(6):
        lit = sum((srow[w][i] & 0xff) << (8 * w) for w in range(4))
        su(f's_lshr_b32 s{60 + i}, {lit}, s46')
        su(f's_and_b32 s{60 + i}, s{60 + i}, 0xff')
        su(f's_mul_i32 s{60 + i}, s{60 + i}, 96')
        su(f's_add_u32 s{60 + i}, s{60 + i}, s45')
    h_q(3)
    h_bar(lambda t: t[0] == 'Q' and t[1] < 3)
    for i in range(4, 7):
        h_q(i)
    for x in su.l[:len(su.l) // 2]:
        k(x)
    h_q(7)
    h_bar(lambda t: t[0] == 'Q' and t[1] < 6)
    for i in range(8, 10):
        h_q(i)
    for x in su.l[len(su.l) // 2:]:
        k(x)
    for i in range(4):
        h_p(i)
    h_bar(lambda t: t[0] == 'Q')
    if int(os.environ.get('K3SL', '0')):
        k(f"s_sleep {os.environ.get('K3SL', '0')}")
    for i in range(4, 10):
        h_p(i)
    h_bar(lambda t: t[0] == 'P' and t[1] < 4)
    stamp(k, 2)
    k('s_waitcnt vmcnt(3)')
    count(76)
    if ROWMAP:
        k('s_lshr_b32 s70, s2, 3')
        k('s_mul_i32 s70, s70, 25600')
        k(f's_add_u32 s69, s70, {M.WOT if is6 else M.WOF}')
        k('v_and_b32 v23, 255, v0')
        k('v_min_u32 v23, 199, v23')
        k('v_lshlrev_b32 v23, 7, v23')
        k(f'buffer_load_dword v23, v23, {WS}, s69 offen')

    def h_read(t):
        for q in range(4):
            k(f'ds_read_b128 {vr(HA + 16 * t + 4 * q, 4)}, v6 offset:{4096 * t + 1024 * q}')

    spin('v19', 16, 1)
    stamp(k, 3)
    for g in range(4):
        k(f'ds_read_b128 {vr(RR + 4 * g, 4)}, v17 offset:{32 * g}')
        k(f'ds_read_b128 {vr(HA + 4 * g, 4)}, v6 offset:{1024 * g}')
    for st in range(2):
        a = HA + 16 * st
        hi, lo = ('v13', 'v15') if st else ('0', 'v14')
        for r in range(16):
            if st == 0 and r == 4:
                k('s_waitcnt vmcnt(0)')
                count(80)
            if st == 0 and r == 8:
                spin('v19', 16, NA)
                for t in range(1, NA):
                    h_read(t)
                for g in range(4):
                    k(f'ds_read_b128 {vr(RS2 + 4 * g, 4)}, v18 offset:{128 + 32 * g}')
            k(f'v_mul_f32 v{TM + r}, v{a + r}, v{RR + r}')
            k(f'v_min_f32 v{TE + r}, {hi}, v{TM + r}')
            k(f'v_exp_f32 v{TE + r}, v{TE + r}')
            k(f'v_max_f32 v{TM + r}, {lo}, v{TM + r}')
            if r >= 1:
                k(f'v_fma_f32 v{TM + r - 1}, v{TM + r - 1}, s39, v{TE + r - 1}')
            if r >= 2 and r % 2 == 0:
                k(f'v_cvt_pk_bf16_f32 v{PP + 8 * st + r // 2 - 1}, v{TM + r - 2}, v{TM + r - 1}')
        k(f'v_fma_f32 v{TM + 15}, v{TM + 15}, s39, v{TE + 15}')
        k(f'v_cvt_pk_bf16_f32 v{PP + 8 * st + 7}, v{TM + 14}, v{TM + 15}')
    P0, P1, P2 = PP, PP + 8, PP + 16
    for q in range(8):
        k(f'v_cndmask_b32 v{TE + q}, v{P0 + q}, v{P1 + q}, s[30:31]')
    stamp(k, 4)
    spin('v19', 16, 3)
    if 'p2' not in X:
        k('s_setprio 1')
    for q in range(4):
        k(f'ds_read_b128 {vr(HA + 32 + 4 * q, 4)}, v16 offset:{1024 * q}')
    a = HA + 32
    for q in range(8):
        k(f'v_mul_f32 v{TM + 2 * q}, v{a + 2 * q}, v{RS2 + 2 * q}')
        k(f'v_mul_f32 v{TM + 2 * q + 1}, v{a + 2 * q + 1}, v{RS2 + 2 * q + 1}')
        k(f'v_cvt_pk_bf16_f32 v{MA + q}, v{TM + 2 * q}, v{TM + 2 * q + 1}')
        k(f'v_cndmask_b32 v{P2 + q}, v{MA + q}, v11, s[34:35]')
        k(f'v_cndmask_b32 v{MB + q}, v{P1 + q}, v{P2 + q}, s[30:31]')
        if q % 4 == 3:
            s = q // 4
            d = vr(DKV + 16, 16)
            if 'p2' in X:
                k('s_setprio 1')
            k(f'{mf} {d}, {vr(P2 + 4 * s, 4)}, {vr(TE + 4 * s, 4)}, {d if s else 0}')
            d = vr(DKV, 16)
            k(f'{mf} {d}, {vr(MB + 4 * s, 4)}, {vr(P0 + 4 * s, 4)}, {d if s else 0}')
            if 'p2' in X:
                k('s_setprio 0')
    for q in range(8):
        k(f'v_cndmask_b32 v{MA + q}, v{P1 + q}, v{MA + q}, s[32:33]')
    for hh in (1, 0):
        for pr in range(6):
            k(f'ds_write_b64 v7, {vr(DKV + 16 * hh + 4 * hh + 2 * pr, 2)} offset:{512 * (6 * hh + pr)}')
    count(36)
    if 'p2' not in X:
        for s in range(2):
            d = vr(DT, 16)
            k(f'{mf} {d}, {vr(MA + 4 * s, 4)}, {vr(ID + 4 * s, 4)}, {d if s else 0}')
    spin('v20', 36, 4)
    stamp(k, 5)
    RD = HA
    for wv in range(4):
        for i in range(3):
            k(f'ds_read_b64 {vr(RD + 6 * wv + 2 * i, 2)}, v12 offset:{8192 * wv + 512 * i}')
    for i in range(6):
        k(f'v_add_f32 v{RD + i}, v{RD + i}, v{RD + 6 + i}')
        k(f'v_add_f32 v{RD + 12 + i}, v{RD + 12 + i}, v{RD + 18 + i}')
    masks = ['s[54:55]', 's[52:53]', 's[52:53]', 's[56:57]', 's[50:51]', 's[50:51]']
    for i in range(6):
        k(f'v_add_f32 v{RD + i}, v{RD + i}, v{RD + 12 + i}')
    for i in range(6):
        k(f's_mov_b64 exec, {masks[i]}')
        if 'noat' in X:
            continue
        k(f'buffer_store_dword v{RD + i}, v10, {WS}, s{60 + i} offen' if 'st' in X else f'buffer_atomic_add_f32 v{RD + i}, v10, {WS}, s{60 + i} offen')
    k('s_mov_b64 exec, -1')
    if 'p2' in X:
        k('s_setprio 1')
        for s in range(2):
            d = vr(DT, 16)
            k(f'{mf} {d}, {vr(MA + 4 * s, 4)}, {vr(ID + 4 * s, 4)}, {d if s else 0}')
        k('s_setprio 0')
    k(f's_add_u32 s44, s43, {PQ + 4 * 2048}')
    k(f'v_cvt_pk_bf16_f32 v{ST}, v{DT + 12}, v{DT + 13}')
    k(f'v_cvt_pk_bf16_f32 v{ST + 1}, v{DT + 14}, v{DT + 15}')
    k(f'buffer_store_dwordx2 {vr(ST, 2)}, v5, {WS}, s44 offen')
    if is6:
        k('v_cmp_eq_u32 vcc, 0, v3')
        for x in range(2):
            k(f'v_cvt_pk_bf16_f32 v{ST + 2 + x}, v{DT + 2 * x}, v{DT + 2 * x + 1}')
            k(f'v_cvt_pk_bf16_f32 v{ST + 4 + x}, v{DT + 4 + 2 * x}, v{DT + 5 + 2 * x}')
            k(f'v_cndmask_b32 v{ST + 2 + x}, v{ST + 2 + x}, v{ST + 4 + x}, vcc')
        k(f's_add_u32 s44, s43, {M.X3 + 4 * 2048}')
        k(f'buffer_store_dwordx2 {vr(ST + 2, 2)}, v5, {WS}, s44 offen')
    stamp(k, 6)
    endk(k, 2)
    k(f'{nm}_exit:')
    k('s_endpgm')
    return k
```

```python
from gen import *
import os
X = set(os.environ.get('XK4', '').split(','))

KVI = 102400
RED = KVI
K4_LDS = KVI + 32768
K4_BLOCK = 640


HALFKV = os.environ.get('HALFKV', '0') == '1'


def gen_k4():
    k = Kern()
    mf = 'v_mfma_f32_16x16x32_bf16'
    for nm, kidx in (('k4', 3), ('k7', 6)):
        k(f'{nm}_kernel:')
        stamp_start(k, kidx)
        k('s_cmp_ge_u32 s2, 256')
        k('s_cbranch_scc1 k4_exit')
        srd_from_arg(k, 4, 64, M.WS_USED)
        if nm == 'k4':
            srd_from_arg(k, 8, 64, M.WS_USED)
            k(f's_mov_b32 s40, {M.PQ1}')
            k(f's_mov_b32 s41, {M.KVS1}')
            k(f's_mov_b32 s42, {M.WOF}')
            k(f's_mov_b32 s43, {M.XH1}')
            k(f's_mov_b32 s44, {M.XH2}')
            k('s_mov_b32 s45, 2048')
            k('s_mov_b32 s46, 16')
            k(f's_mov_b32 s47, {M.TS}')
            k('s_branch k4_main')
        else:
            srd_from_arg(k, 8, 48, 2048 * 1280)
            k(f's_mov_b32 s40, {M.PQ2}')
            k(f's_mov_b32 s41, {M.KVS2}')
            k(f's_mov_b32 s42, {M.WOT}')
            k(f's_mov_b32 s43, {M.X3}')
            k('s_mov_b32 s44, 0')
            k('s_mov_b32 s45, 16')
            k('s_mov_b32 s46, 1280')
            k(f's_mov_b32 s47, {128 * 1280}')
    k('k4_main: ; fallstate')
    k('v_lshlrev_b32 v5, 4, v0')
    k('v_and_b32 v1, 63, v0')
    k('v_lshrrev_b32 v2, 6, v0')
    k('v_readfirstlane_b32 s19, v2')
    k('v_and_b32 v2, 15, v0')
    k('v_bfe_u32 v3, v0, 4, 2')
    k('s_and_b32 s20, s19, 3')
    k('s_lshr_b32 s19, s19, 2')
    if os.environ.get('ROWMAP', '0') == '1':
        k('s_and_b32 s21, s2, 7')
        k('s_lshl_b32 s21, s21, 1')
        k('s_lshr_b32 s22, s2, 7')
        k('s_add_u32 s21, s21, s22')
        k('s_bfe_u32 s24, s2, 0x10006')
        k('s_bfe_u32 s22, s2, 0x30003')
    else:
        k('s_bfe_u32 s21, s2, 0x20001')
        k('s_lshl_b32 s21, s21, 2')
        k('s_lshr_b32 s22, s2, 6')
        k('s_add_u32 s21, s21, s22')
        k('s_bfe_u32 s24, s2, 0x10005')
        k('s_and_b32 s22, s2, 1')
        k('s_lshl_b32 s22, s22, 2')
        k('s_bfe_u32 s23, s2, 0x20003')
        k('s_add_u32 s22, s22, s23')
    k('v_lshlrev_b32 v6, 4, v1')
    k('s_cmp_eq_u32 s19, 2')
    k('s_cbranch_scc1 k4_ld')
    k('s_lshl_b32 s24, s24, 6')
    k('s_lshl_b32 s23, s20, 4')
    k('s_add_u32 s24, s24, s23')
    k('v_add_u32 v4, s24, v2')
    k(f's_mul_i32 s23, s21, {M.TS}')
    k('s_add_u32 s40, s40, s23')
    k(f's_mul_i32 s26, s19, {40 * 2048}')
    k('s_add_u32 s40, s40, s26')
    k('v_lshlrev_b32 v7, 11, v3')
    k('v_lshl_add_u32 v8, v4, 4, v7')
    k('v_add_u32 v10, 4096, v8')
    k('v_cmp_eq_u32 vcc, 2, v3')
    k('v_cndmask_b32 v9, v8, v10, vcc')
    k('v_cmp_eq_u32 vcc, 3, v3')
    k('v_mov_b32 v11, 0x40000000')
    k('v_cndmask_b32 v9, v9, v11, vcc')
    k('v_cndmask_b32 v10, v10, v11, vcc')
    k('s_mul_i32 s26, s19, 51200')
    KS, DD, PO, ACC, RS, RF = 24, 24, 72, 24, 44, 52
    KF, WF = 32, 0
    issued = []
    PASS = [0, 4, 1, 5, 2, 6, 3, 7] if HALFKV else list(range(8))
    KSR = lambda i: (KS + 4 * i if (i < 4 or not HALFKV) else 92 + 4 * (i - 4))
    if HALFKV:
        ops = [('kv', i) for i in range(4)] + [('pq', 0), ('pq', 1)] + [('kv', i) for i in range(4, 8)] + [('pq', i) for i in range(2, 16)]
    else:
        ops = [('kv', i) for i in range(8)] + [('pq', i) for i in range(16)]
    state = {'mf': -1}

    def issue(n=1):
        for _ in range(n):
            if not ops:
                return
            if ops[0][0] == 'pq' and ops[0][1] - 8 > state['mf']:
                return
            op = ops.pop(0)
            kind, i = op
            if 'nopq' in X and kind == 'pq' and i >= 2:
                continue
            if kind == 'kv':
                if HALFKV:
                    k(f's_add_u32 s48, s41, {8064 * PASS[i]}')
                    k(f'buffer_load_dwordx4 {vr(KSR(i), 4)}, v5, {WS}, s48 offen')
                else:
                    k(f'buffer_load_dwordx4 {vr(KS + 4 * i, 4)}, v5, {WS}, s41 offen')
                    k('s_add_u32 s41, s41, 8064')
            elif kind == 'pq':
                k(f'buffer_load_dwordx4 {ar(4 * (i % 8), 4)}, {"v9" if i % 2 == 0 else "v10"}, {WS}, s40 offen')
                if i % 2:
                    k(f's_add_u32 s40, s40, {5 * 2048}')
            elif kind == 'res':
                if i == 0:
                    k(f'buffer_load_dwordx4 {vr(RS, 4)}, v8, {WS}, s35 offen')
                else:
                    k(f'buffer_load_dwordx2 {vr(RS + 4, 2)}, v15, {WS}, s43 offen')
            issued.append(op)

    issue(8 if HALFKV else 10)
    stamp(k, 1)
    k('v_mul_u32_u24 v11, 521, v0')
    k('v_lshrrev_b32 v11, 16, v11')
    k('v_mul_u32_u24 v12, 126, v11')
    k('v_sub_u32 v12, v0, v12')
    k('v_mul_u32_u24 v13, 43, v12')
    k('v_lshrrev_b32 v13, 8, v13')
    k('v_mul_u32_u24 v14, 6, v13')
    k('v_sub_u32 v12, v12, v14')
    k('v_and_b32 v14, 1, v11')
    k('v_lshl_add_u32 v13, v14, 2, v13')
    k('v_subrev_u32 v13, 4, v13')
    k('v_add_u32 v16, 21, v13')
    k('v_cmp_gt_i32 vcc, 0, v13')
    k('v_cndmask_b32 v13, v13, v16, vcc')
    k('v_mul_u32_u24 v14, 52, v13')
    k('v_lshrrev_b32 v14, 8, v14')
    k('v_mul_u32_u24 v16, 5, v14')
    k('v_cmp_eq_u32 vcc, v16, v13')
    k('v_sub_u32 v13, v13, v14')
    k('v_subrev_u32 v13, 1, v13')
    k('v_lshrrev_b32 v16, 1, v12')
    k('v_lshl_add_u32 v13, v16, 4, v13')
    k('v_mad_u32_u24 v14, v16, 5, v14')
    k('v_add_u32 v14, 48, v14')
    k('v_cndmask_b32 v13, v13, v14, vcc')
    k('v_and_b32 v12, 1, v12')
    k('v_lshlrev_b32 v12, 3, v12')
    k('v_lshl_add_u32 v12, v13, 4, v12')
    k('v_lshl_add_u32 v11, v11, 10, v12')
    k(f'v_add_u32 v11, {KVI}, v11')
    k('v_cmp_gt_u32 vcc, 504, v0')
    k('s_mov_b64 s[38:39], vcc')

    def conv(rng):
        k('s_mov_b64 exec, s[38:39]')
        for i in rng:
            b = KSR(i)
            k(f'v_cvt_pk_bf16_f32 v{b}, v{b}, v{b + 1}')
            k(f'v_cvt_pk_bf16_f32 v{b + 1}, v{b + 2}, v{b + 3}')
            k(f'ds_write_b64 v11, {vr(b, 2)} offset:{4096 * PASS[i]}')
        k('s_mov_b64 exec, -1')
    conv(range(4) if HALFKV else range(8))
    issue(2)
    k('v_min_u32 v13, 2, v3')
    k(f's_lshl_b32 s28, s19, 14')
    k(f's_add_u32 s28, s28, {KVI}')
    k('v_lshl_add_u32 v12, v13, 4, v2')
    k('v_lshl_add_u32 v16, v12, 4, s28')
    k('v_lshrrev_b32 v12, 2, v2')
    k('v_add_u32 v12, 1, v12')
    k('v_and_b32 v14, 3, v2')
    k('v_cmp_eq_u32 vcc, 0, v14')
    k('v_cndmask_b32 v12, 0, v12, vcc')
    k('v_mad_u32_u24 v12, v13, 5, v12')
    k('v_lshl_add_u32 v17, v12, 4, s28')
    k('v_mov_b32 v108, 0')
    k(f'v_mov_b32 v109, {fhex(1e-6)}')
    k('v_mov_b32 v110, 0')
    k('v_mov_b32 v111, 0')
    k('s_waitcnt lgkmcnt(0)')
    k('s_barrier')
    stamp(k, 2)
    su = []
    kk = k
    k = lambda t: su.append(t)
    k('v_add_u32 v21, s26, v6')
    k('s_lshl_b32 s28, s19, 11')
    k('v_add_u32 v14, s28, v21')
    k('v_subrev_u32 v22, s28, v21')
    k('v_lshrrev_b32 v18, 1, v3')
    k('v_lshlrev_b32 v15, 11, v18')
    k('v_and_b32 v7, 1, v3')
    k('v_lshl_add_u32 v15, v7, 3, v15')
    k('v_lshl_add_u32 v15, v4, 4, v15')
    k('s_mul_i32 s28, s22, 20480')
    k('s_add_u32 s43, s43, s28')
    k('s_add_u32 s43, s43, s23')
    k('s_lshl_b32 s28, s19, 13')
    k('s_add_u32 s35, s43, s28')
    k('s_add_u32 s43, s43, 16384')
    k(f's_mov_b32 s29, {fhex(1e-6)}')
    k('v_mul_lo_u32 v19, v3, s45')
    k('v_mul_lo_u32 v20, v4, s46')
    k('v_add_u32 v19, v19, v20')
    k('v_mul_lo_u32 v18, v18, s45')
    k('v_lshl_add_u32 v18, v7, 3, v18')
    k('v_add_u32 v20, v18, v20')
    k('s_mul_i32 s30, s22, 10')
    k('s_mul_i32 s30, s30, s45')
    k('s_add_u32 s30, s30, s44')
    k('s_mul_i32 s31, s21, s47')
    k('s_add_u32 s30, s30, s31')
    k('s_lshl_b32 s31, s45, 3')
    k('s_add_u32 s33, s30, s31')
    k('s_lshl_b32 s31, s45, 2')
    k('s_mul_i32 s31, s31, s19')
    k('s_add_u32 s30, s30, s31')
    k('s_lshl_b32 s28, s19, 2')
    k('s_add_u32 s28, s28, s20')
    k('s_mul_i32 s34, s28, 3072')
    k(f's_add_u32 s34, s34, {RED}')
    k('v_add_u32 v18, s34, v6')
    k('s_xor_b32 s28, s28, 4')
    k('s_mul_i32 s34, s28, 3072')
    k(f's_add_u32 s34, s34, {RED}')
    k('v_add_u32 v23, s34, v6')
    k = kk

    def rd_kv(h):
        if 'linkv' in X:
            k(f'ds_read_b128 {ar(KF + 8 * (h % 3), 4)}, v6 offset:{1024 * h}')
            k(f'ds_read_b128 {ar(KF + 8 * (h % 3) + 4, 4)}, v6 offset:{1024 * h + 32768}')
            return
        k(f'ds_read_b128 {ar(KF + 8 * (h % 3), 4)}, v16 offset:{1024 * h}')
        k(f'ds_read_b128 {ar(KF + 8 * (h % 3) + 4, 4)}, v17 offset:{1024 * h + 768}')

    def rd_wo(n):
        ks, t = divmod(n, 5)
        base = 'v14' if t < 2 else ('v22' if t < 4 else 'v21')
        k(f'ds_read_b128 {ar(WF + 4 * (n % 12), 4)}, {base} offset:{ks * 5120 + t * 1024}')

    dreg = lambda h: DD + 8 * (h % 6)

    def fin(h):
        if 'nofin' in X:
            return
        d = dreg(h)
        k(f'v_rcp_f32 v{d + 6}, v{d + 5}')

    def fin2(h):
        if 'nofin' in X:
            return
        d = dreg(h)
        for x in range(5):
            k(f'v_mul_f32 v{d + x}, v{d + x}, v{d + 6}')
        p = PO + 5 * (h // 2)
        if h % 2 == 0:
            k(f'v_cvt_pk_bf16_f32 v{p}, v{d}, v{d + 1}')
            k(f'v_cvt_pk_bf16_f32 v{p + 1}, v{d + 2}, v{d + 3}')
        else:
            k(f'v_cvt_pk_bf16_f32 v{p + 2}, v{dreg(h - 1) + 4}, v{d}')
            k(f'v_cvt_pk_bf16_f32 v{p + 3}, v{d + 1}, v{d + 2}')
            k(f'v_cvt_pk_bf16_f32 v{p + 4}, v{d + 3}, v{d + 4}')

    for h in range(2):
        rd_kv(h)
    issue(3)
    for h in range(16):
        if HALFKV and h == 3:
            conv(range(4, 8))
        if HALFKV and h == 6:
            k('s_waitcnt lgkmcnt(0)')
            k('s_barrier')
        if h + 2 < 16:
            rd_kv(h + 2)
        for t in range(2):
            k(f'{mf} {vr(dreg(h) + 4 * t, 4)}, {ar(KF + 8 * (h % 3) + 4 * t, 4)}, {ar(4 * (h % 8), 4)}, {"v[108:111]" if t else 0}')
        state['mf'] = h
        if 'fine' in X and h in (0, 4, 8, 12):
            stamp(k, 3 + h // 4)
        issue(1)
        for _ in range(3):
            if su:
                k(su.pop(0))
        if h >= 2:
            fin(h - 2)
        if h >= 3:
            fin2(h - 3)
    assert not ops and not su, su
    fin(14)
    fin2(13)
    fin(15)
    fin2(14)
    fin2(15)
    if 'fine' not in X:
        stamp(k, 3)
    ops += [('res', 0), ('res', 1)]
    issue(2)
    k('s_barrier')
    if 'fine' not in X:
        stamp(k, 4)
    AH = 8
    for n in range(AH):
        rd_wo(n)
    for n in range(50):
        ks, t = divmod(n, 5)
        nn = n + AH
        if nn < 50:
            if nn in (15, 30, 40):
                k('s_barrier')
            rd_wo(nn)
        d = vr(ACC + 4 * t, 4)
        k(f'{mf} {d}, {ar(WF + 4 * (n % 12), 4)}, {vr(PO + 4 * ks, 4)}, {d if ks else 0}')
        if 42 <= n < 48:
            x = n - 42
            k(f'v_lshlrev_b32 v{RF + 2 * x}, 16, v{RS + x}')
            k(f'v_and_b32 v{RF + 2 * x + 1}, 0xffff0000, v{RS + x}')
    if 'fine' not in X:
        stamp(k, 5)
    for t in range(3):
        k(f'ds_write_b128 v18, {vr(ACC + 8 + 4 * t, 4)} offset:{1024 * t}')
    for x in range(8):
        k(f'v_add_f32 v{ACC + x}, v{ACC + x}, v{RF + x}')
    for x in range(4):
        k(f'v_add_f32 v{ACC + 8 + x}, v{ACC + 16 + x}, v{RF + 8 + x}')
    k('s_waitcnt lgkmcnt(0)')
    k('s_barrier')
    for t in range(3):
        k(f'ds_read_b128 {vr(RF + 4 * t, 4)}, v23 offset:{1024 * t}')
    for x in range(6):
        k(f'v_pk_add_f32 {vr(ACC + 2 * x, 2)}, {vr(ACC + 2 * x, 2)}, {vr(RF + 2 * x, 2)}')
        k(f'v_cvt_pk_bf16_f32 v{PO + x}, v{ACC + 2 * x}, v{ACC + 2 * x + 1}')
        if x == 3:
            k(f'buffer_store_dwordx4 {vr(PO, 4)}, v19, {AUX}, s30 offen')
    k('s_cmp_eq_u32 s19, 0')
    k('s_cbranch_scc1 k4_st3')
    for x in range(4):
        k(f'v_mov_b32 v{ACC + 8 + x}, 0')
    k('s_branch k4_ssq')
    k('k4_st3:')
    k(f'buffer_store_dwordx2 {vr(PO + 4, 2)}, v20, {AUX}, s33 offen')
    k('k4_ssq: ; nojoinwait')
    k('s_cmp_eq_u32 s46, 16')
    k('s_cbranch_scc0 k4_done')
    k('s_add_u32 s34, s22, s19')
    k('s_cmp_eq_u32 s34, 0')
    k('s_cselect_b32 s34, 16, 0')
    k('v_cmp_gt_u32 vcc, s34, v1')
    k('v_mov_b32 v12, 0')
    k(f'v_cndmask_b32 v{ACC + 1}, v{ACC + 1}, v12, vcc')
    k(f'v_pk_mul_f32 v[12:13], {vr(ACC, 2)}, {vr(ACC, 2)}')
    k(f'v_pk_mul_f32 v[14:15], {vr(ACC + 2, 2)}, {vr(ACC + 2, 2)}')
    for x in range(2, 6):
        t = 'v[12:13]' if x % 2 == 0 else 'v[14:15]'
        k(f'v_pk_fma_f32 {t}, {vr(ACC + 2 * x, 2)}, {vr(ACC + 2 * x, 2)}, {t}')
    k('v_pk_add_f32 v[12:13], v[12:13], v[14:15]')
    k('v_add_f32 v12, v12, v13')
    k('v_mov_b32 v13, v12')
    k('v_permlane16_swap_b32 v12, v13')
    k('v_add_f32 v12, v12, v13')
    k('v_mov_b32 v13, v12')
    k('v_permlane32_swap_b32 v12, v13')
    k('v_add_f32 v12, v12, v13')
    k('v_lshlrev_b32 v13, 2, v4')
    k('s_lshl_b32 s34, s21, 9')
    k(f's_add_u32 s34, s34, {M.SSQ2}')
    k('s_mov_b64 exec, 0xffff')
    k(f'buffer_atomic_add_f32 v12, v13, {WS}, s34 offen')
    k('s_mov_b64 exec, -1')
    endk(k, 3)
    k('k4_done:')
    endk(k, 3)
    k('k4_ld:')
    k('s_mul_i32 s25, s22, 102400')
    k('s_add_u32 s25, s25, s42')
    k('s_mul_i32 s27, s20, 51200')
    k('s_add_u32 s25, s25, s27')
    if 'touch' in X:
        k('s_lshr_b32 s30, s2, 3')
        k('s_lshl_b32 s31, s30, 1')
        k('s_add_u32 s31, s31, s20')
        k('s_lshl_b32 s31, s31, 10')
        k('s_add_u32 s31, s31, s41')
        k('v_lshrrev_b32 v7, 3, v1')
        k('v_and_b32 v8, 7, v1')
        k('v_lshlrev_b32 v8, 7, v8')
        k('v_lshl_add_u32 v9, v7, 28, v8')
        k(f'buffer_load_dword v12, v9, {WS}, s31 offen')
        k(f's_mul_i32 s31, s21, {M.TS}')
        k('s_add_u32 s31, s31, s40')
        k('s_lshl_b32 s32, s24, 10')
        k('s_add_u32 s31, s31, s32')
        k('s_mul_i32 s32, s20, 40')
        k('s_add_u32 s32, s32, s23')
        k('s_lshl_b32 s32, s32, 11')
        k('s_add_u32 s31, s31, s32')
        k('v_lshl_add_u32 v9, v7, 13, v8')
        k(f'buffer_load_dword v13, v9, {WS}, s31 offen')
        k('s_add_u32 s31, s31, 65536')
        k('v_lshrrev_b32 v10, 4, v1')
        k('v_lshl_add_u32 v9, v10, 28, v9')
        k(f'buffer_load_dword v14, v9, {WS}, s31 offen')
        k('s_lshr_b32 s31, s30, 2')
        k('s_lshl_b32 s31, s31, 7')
        k('s_add_u32 s31, s31, s25')
        k('v_min_u32 v9, 49, v1')
        k('v_lshlrev_b32 v9, 10, v9')
        k(f'buffer_load_dword v15, v9, {WS}, s31 offen')
    k(f's_sleep {int(os.environ.get("LDSLEEP", "4"))}')
    NPRE = int(os.environ.get("LDPRE", "6"))
    THR = int(os.environ.get("LDTHR", "8"))
    NB2 = int(os.environ.get("LDB2", "34"))
    for i in range(50):
        if i % 4 == 0:
            k(f's_add_u32 m0, s27, {1024 * i}')
        if i >= THR and i < NB2:
            k(f's_waitcnt vmcnt({THR - 1})')
        k(f'buffer_load_dwordx4 v6, {WS}, s25 offen offset:{1024 * (i % 4)} lds')
        if i % 4 == 3:
            k('s_add_u32 s25, s25, 4096')
        if i == NPRE - 1:
            k('s_barrier')
        if HALFKV and i == NPRE + 3:
            k('s_barrier')
        if i == NB2 - 1:
            k(f's_waitcnt vmcnt({NB2 - 15})')
            k('s_barrier')
        if i == 41:
            k('s_waitcnt vmcnt(12)')
            k('s_barrier')
    k('s_waitcnt vmcnt(10)')
    k('s_barrier')
    k('s_waitcnt vmcnt(0)')
    k('s_barrier')
    k('k4_exit: ; nojoinwait2')
    k('s_endpgm')
    return k
```

```python
import numpy as np
S, D, H, Dh = 2048, 640, 32, 20
def bf2f(u): return (np.asarray(u).astype(np.uint32) << 16).view(np.float32)
def f2bf(x):
    x = np.ascontiguousarray(x, dtype=np.float32); u = x.view(np.uint32)
    return ((u + 0x7FFF + ((u >> 16) & 1)) >> 16).astype(np.uint16)
def rb(x): return bf2f(f2bf(x))

TS = 80 * 2048 + 2048
XH_BYTES = 16 * TS
WT_BYTES = 320 * 8192
off = 0
def _alloc(n):
    global off
    o = off; off += (n + 4095) // 4096 * 4096; return o
import os
if os.environ.get('ALIAS') == '2':
    XH0 = _alloc(XH_BYTES); XH1 = _alloc(XH_BYTES); XH2 = XH0; XH3 = XH1
    X3 = XH0; PQ1 = _alloc(XH_BYTES); PQ2 = PQ1
elif os.environ.get('ALIAS'):
    XH0 = _alloc(XH_BYTES); XH1 = XH0; XH2 = XH0; XH3 = XH0
    X3 = _alloc(XH_BYTES); PQ1 = _alloc(XH_BYTES); PQ2 = PQ1
else:
    XH0 = _alloc(XH_BYTES); XH1 = _alloc(XH_BYTES); XH2 = _alloc(XH_BYTES); XH3 = _alloc(XH_BYTES)
    X3 = _alloc(XH_BYTES); PQ1 = _alloc(XH_BYTES); PQ2 = _alloc(XH_BYTES)
WT = _alloc(WT_BYTES)
WQ = _alloc(16 * 40 * 5 * 1024)
WOF = _alloc(8 * 100 * 1024); WOT = _alloc(8 * 100 * 1024)
SSQ0 = _alloc(8192)
ZERO_START = off
SSQ2 = _alloc(8192)
KVS_BYTES = 32 * 21 * 96
KVS1 = _alloc(KVS_BYTES + 1024); KVS2 = _alloc(KVS_BYTES + 1024)
ZERO_END = off
STAMP = _alloc(8 * 262144)
WS_USED = off

def freq(cs):
    b, m = divmod(cs, 16)
    if b >= 1: return b + 40 * m if m < 8 else 40 - b + 40 * (m - 8)
    if m == 0: return 320
    return 40 * m if m < 8 else 20 + 40 * (m - 8)
FREQ = np.array([freq(c) for c in range(320)])
assert sorted(FREQ) == list(range(1, 321))
def Fmat():
    d = np.arange(D)[:, None]; F = np.zeros((D, D))
    c = FREQ[None, :]
    F[:, 0::2] = np.sqrt(2 / D) * np.cos(2 * np.pi * d * c / D)
    F[:, 1::2] = -np.sqrt(2 / D) * np.sin(2 * np.pi * d * c / D)
    F[:, 0] = ((-1.0) ** np.arange(D)) / np.sqrt(D)
    F[:, 1] = 1 / np.sqrt(D)
    return F
def T1mat():
    n1 = np.arange(40); T1 = np.zeros((20, 2, 40)); s1 = 1 / np.sqrt(40)
    T1[0, 0] = s1; T1[0, 1] = s1 * (-1.0) ** n1
    for b in range(1, 20):
        T1[b, 0] = np.sqrt(2) * s1 * np.cos(2 * np.pi * b * n1 / 40); T1[b, 1] = -np.sqrt(2) * s1 * np.sin(2 * np.pi * b * n1 / 40)
    return T1
def T2mat():
    T1 = T1mat(); M1 = np.zeros((D, 20, 2, 16))
    for n2 in range(16): M1[n2::16, :, :, n2] = T1.transpose(2, 0, 1)
    T2 = M1.reshape(D, D).T @ Fmat()
    T2[np.abs(T2) < 1e-9] = 0
    T2 = T2.reshape(20, 2, 16, 20, 32)
    for b in range(20):
        for b2 in range(20):
            if b != b2: assert np.all(T2[b, :, :, b2] == 0), (b, b2)
    return np.stack([T2[b, :, :, b] for b in range(20)])
def n1_of(g, i): return 16 * (i // 4) + 4 * g + i % 4 if i < 8 else 32 + 2 * g + (i - 8)
def T1table():
    T1 = T1mat(); tab = np.zeros((3, 2, 64, 8), np.float32)
    for t in range(3):
        for l in range(64):
            i, g = l % 16, l // 16
            sig = 4 * t + i % 4; gp = i // 4
            if sig >= 10: continue
            b, ri = 5 * gp + sig // 2, sig % 2
            for e in range(8): tab[t, 0, l, e] = T1[b, ri, n1_of(g, e)]
            for e in range(2): tab[t, 1, l, e] = T1[b, ri, n1_of(g, 8 + e)]
    return f2bf(tab)
def T2table():
    T2 = T2mat(); tab = np.zeros((20, 2, 64, 8), np.float32)
    for b in range(20):
        for t in range(2):
            for l in range(64):
                i, g = l % 16, l // 16
                kl = 8 * (i // 4) + 4 * t + i % 4
                for ri in range(2):
                    for q in range(4): tab[b, t, l, 4 * ri + q] = T2[b, ri, 4 * g + q, kl]
    return f2bf(tab)
def fft640(x):
    V = x.shape[0]
    xm = x.reshape(V, 40, 16).astype(np.float32)
    U = rb(np.einsum('brn,vnm->vbrm', rb(T1mat()), xm))
    return np.einsum('vbrm,brmk->vbk', U, rb(T2mat())).reshape(V, D).astype(np.float32)

def from_gran(u):
    t = u.reshape(16, TS // 2)[:, :80 * 1024].reshape(16, 80, 128, 8)
    return bf2f(t.transpose(0, 2, 1, 3).reshape(2048, 640))

def wq_col(nt, st, cl):
    h0, h1 = 2 * nt, 2 * nt + 1
    Q, K, V = 0, 640, 1280
    if st >= 3:
        hf = (cl // 4) % 2; rho = 4 * (cl // 8) + cl % 4
        gi = 2 * (rho // 8) + hf
        if st == 4: return ('i', 40 * nt + 8 * gi + rho % 8)
        return ('w', Q + 20 * (h0 + gi // 2) + 4 * (gi // 2) + 8 * hf + rho % 8)
    if st == 0:
        return ('w', K + 20 * h0 + cl) if cl < 20 else ('w', K + 20 * h1 + cl - 20)
    if st == 1:
        if cl < 8: return ('w', K + 20 * h1 + 12 + cl)
        if cl < 24: return ('w', V + 20 * h0 + cl - 8)
        if cl < 28: return ('w', Q + 20 * h0 + 16 + cl - 24)
        return ('w', Q + 20 * h1 + cl - 28)
    if cl < 4: return ('w', V + 20 * h0 + 16 + cl)
    if cl < 12: return ('i', 40 * nt + 32 + (cl - 8 if cl >= 8 else cl))
    return ('w', V + 20 * h1 + cl - 12)
WQ_POS_W = np.zeros(1920, np.int64); WQ_POS_I = np.zeros(640, np.int64)
for nt in range(16):
    for st in range(5):
        for cl in range(32):
            k, n = wq_col(nt, st, cl)
            (WQ_POS_W if k == 'w' else WQ_POS_I)[n] = nt * 204800 + st * 1024 + cl * 16
def wq_joff(j): return (j // 2) * 5120 + (j % 2) * 512
def build_WQ(Wp, Fi):
    img = np.zeros(16 * 40 * 5 * 512, np.uint16)
    for src, pos in ((Wp, WQ_POS_W), (Fi, WQ_POS_I)):
        u = f2bf(src).reshape(-1, 80, 8)
        for j in range(80):
            idx = (pos + wq_joff(j)) // 2
            img[idx[:, None] + np.arange(8)[None, :]] = u[:, j]
    return img
def o_c(ks, g, e8):
    oc, f = divmod(ks, 5); u = 8 * f + e8
    return 20 * (8 * oc + u // 5) + 5 * g + u % 5
def out_col(nt, t5, i):
    gd, r = divmod(i, 4)
    if t5 < 4: return 80 * nt + 32 * (t5 // 2) + 8 * gd + 4 * (t5 % 2) + r
    return 80 * nt + 64 + 4 * gd + r
OC = np.array([[[o_c(ks, g, e) for e in range(8)] for g in range(4)] for ks in range(20)])
assert sorted(OC.ravel()) == list(range(640))
OUTCOL = np.array([[[out_col(nt, t, i) for i in range(16)] for t in range(5)] for nt in range(8)])
def build_WO(M):
    u = f2bf(M); img = np.zeros((8, 20, 5, 4, 16, 8), np.uint16)
    for nt in range(8):
        for t in range(5):
            img[nt, :, t] = u[OC[:, :, None, :], OUTCOL[nt, t][None, None, :, None]]
    return img.ravel()
WO_POS = np.zeros(640, np.int64)
for nt in range(8):
    for t in range(5):
        for i in range(16): WO_POS[OUTCOL[nt, t, i]] = nt * 102400 + t * 1024 + i * 16
def build_WT(wr, wi):
    img = np.zeros((320, 8, 64, 4, 2), np.uint16)
    for a, ri in ((wr, 0), (wi, 1)):
        m = a[:, FREQ].reshape(8, 4, 64, 320)
        img[..., ri] = m.transpose(3, 0, 2, 1)
    return img.ravel()

def colpass(xh, ssq, wr, wi):
    r = (1 / np.sqrt(ssq / D + 1e-5) / 2048).astype(np.float32)
    u = rb(xh * r[:, None])
    uc = u[:, 0::2] + 1j * u[:, 1::2]; uc[:, 0] = uc[:, 0].real
    Wc = (wr + 1j * wi)[:, FREQ]
    rc = lambda z: rb(z.real) + 1j * rb(z.imag)
    N1, N2 = 64, 32
    n1 = np.arange(N1); n2 = np.arange(N2)
    F1 = rc(np.exp(-2j * np.pi * np.outer(n1, n1) / N1)); F2 = rc(np.exp(-2j * np.pi * np.outer(n2, n2) / N2))
    tw = np.exp(-2j * np.pi * np.outer(n2, n1) / S)
    a = uc.reshape(N1, N2, 320)
    d1 = rc(np.einsum('abc,ak->bkc', a, F1) * tw[:, :, None])
    d2 = rc(np.einsum('bkc,bj->jkc', d1, F2) * Wc.reshape(N2, N1, 320))
    d3 = rc(np.einsum('jkc,jm->mkc', d2, F2.conj()) * tw.conj()[:, :, None])
    y = np.einsum('mkc,ka->amc', d3, F1.conj()).reshape(S, 320)
    out = xh.copy()
    out[:, 0::2] += y.real.astype(np.float32); out[:, 3::2] += y.imag[:, 1:].astype(np.float32)
    return rb(out)
def ssq_of(xh):
    t = xh.astype(np.float64) ** 2
    return t.sum(1) - t[:, 1]
PQ_ORDER = np.array([[40 * t + d for d in list(range(0, 16)) + list(range(24, 40)) + [16, 17, 18, 19, 20, 21, 22, 23]] for t in range(16)]).ravel()
def qkv_phase(xh, Wp):
    r = (1 / np.sqrt(ssq_of(xh) / D + 1e-5)).astype(np.float32)
    qkv = (xh @ Wp.T) * r[:, None]
    q, k, v = qkv[:, :640], qkv[:, 640:1280], qkv[:, 1280:]
    phi = lambda t: np.where(t > 0, t + 1, np.exp(np.minimum(t, 0))) + 1e-6
    pq, pk, v = rb(phi(q)), rb(phi(k)).reshape(S, H, Dh), rb(v).reshape(S, H, Dh)
    kv = np.einsum('shd,she->hed', pk, v); z = pk.sum(0)
    kvs = np.zeros((32, 21, 24), np.float32)
    full = np.concatenate([z[:, None, :], kv], 1)
    st = full.copy()
    st[0::2] = full[0::2][:, [17, 18, 19, 20, 0] + list(range(1, 17))]
    kvs[0::2, :, :20] = st[0::2]
    kvs[1::2, :, :16] = st[1::2, :, 4:]; kvs[1::2, :, 20:24] = st[1::2, :, :4]
    return pq, kvs, full
def o_phase(pq, full):
    f = rb(full); p = pq.reshape(S, H, Dh)
    num = np.einsum('shd,hed->she', p, f[:, 1:]); den = np.einsum('shd,hd->sh', p, f[:, 0]) + 1e-6
    return rb(num / den[:, :, None]).reshape(S, D)
def expected(d):
    x0 = bf2f(d['A_x'])[0]; wr = bf2f(d['A_w_r']); wi = bf2f(d['A_w_i']); wqkv = bf2f(d['B_wqkv']); wo = bf2f(d['B_wo'])
    E = {}
    xh0 = rb(fft640(x0)); E['XH0'] = xh0
    x64 = x0.astype(np.float64); E['SSQ0'] = ((x64 ** 2).sum(1) - x64.sum(1) ** 2 / D)
    Wp = rb(fft640(wqkv.T.copy())); Wp[:, 1] = 0; E['Wp'] = Wp
    Fi = rb(fft640(np.eye(D, dtype=np.float32))); E['Fi'] = Fi
    wop = rb(fft640(wo)); E['wop'] = wop
    E['WQ'] = build_WQ(Wp, Fi); E['WOF'] = build_WO(wop); E['WOT'] = build_WO(wo); E['WT'] = build_WT(d['A_w_r'], d['A_w_i'])
    xh1 = colpass(xh0, E['SSQ0'], wr, wi); E['XH1'] = xh1
    pq, kvs, full = qkv_phase(xh1, Wp); E['PQ1'] = pq; E['KVS1'] = kvs
    o1 = o_phase(pq, full)
    xh2f = xh1 + o1 @ wop; xh2 = rb(xh2f); E['XH2'] = xh2; E['SSQ2'] = ssq_of(xh2f)
    xh3 = colpass(xh2, E['SSQ2'], wr, wi); E['XH3'] = xh3
    x3 = rb(xh3 @ Fi.T); E['X3'] = x3
    pq, kvs, full = qkv_phase(xh3, Wp); E['PQ2'] = pq; E['KVS2'] = kvs
    o2 = o_phase(pq, full)
    E['out'] = rb(x3 + o2 @ wo)
    return E
if __name__ == '__main__':
    d = np.load('ref0.npz'); E = expected(d)
    ref = bf2f(d['out'])[0]; ex = d['exact'][0]
    rel = lambda a, b: np.linalg.norm(a - b) / np.linalg.norm(b)
    print('vs exact', rel(E['out'], ex), 'vs ref', rel(E['out'], ref), 'WS_USED', WS_USED)
    print(T1table().shape, T2table().shape)
```

```python
import sys
from gen import *
import gen_k2
def main():
    upto = 7
    for a in sys.argv:
        if a.startswith('--upto='): upto = int(a.split('=')[1])
    bodies = [(gen_k1(), ['k1_kernel']), (gen_k2.gen_k2(), ['k2_kernel', 'k5_kernel'])]
    L = [('k1_kernel', 256, 256, K1_LDS), ('k2_kernel', 248, 512, gen_k2.K2_LDS)]
    try:
        import gen_k3
        bodies.append((gen_k3.gen_k3(False), ['k3_kernel'])); bodies.append((gen_k3.gen_k3(True), ['k6_kernel']))
        L.append(('k3_kernel', 256, gen_k3.K3_BLOCK, gen_k3.K3_LDS))
        import gen_k4
        bodies.append((gen_k4.gen_k4(), ['k4_kernel', 'k7_kernel']))
        L += [('k4_kernel', 256, gen_k4.K4_BLOCK, gen_k4.K4_LDS), ('k5_kernel', 176, 512, gen_k2.K2_LDS), ('k6_kernel', 256, gen_k3.K3_BLOCK, gen_k3.K6_LDS), ('k7_kernel', 256, gen_k4.K4_BLOCK, gen_k4.K4_LDS)]
    except ImportError as e:
        print('partial build:', e, file=sys.stderr)
        L.append(('k5_kernel', 176, 512, gen_k2.K2_LDS))
    L = L[:upto]
    if os.environ.get('PFWQ'):
        L = [(n, 256 if n == 'k5_kernel' else g, b, l) for (n, g, b, l) in L]
    if os.environ.get('NOSIDE'):
        L = [(n, 160 if n in ('k2_kernel', 'k5_kernel') else g, b, l) for (n, g, b, l) in L]
    if os.environ.get('NOF'):
        L = [(n, 128 if n == 'k1_kernel' else g, b, l) for (n, g, b, l) in L]
    if SDIAG or ADIAG:
        ke = Kern(); ke('ke_kernel:'); stamp_start(ke, 7 if ADIAG else 9); ke('s_endpgm')
        bodies.append((ke, ['ke_kernel']))
        L = [(n, g + 8, b, l) for (n, g, b, l) in L] + [('ke_kernel', 8, 64, 0)]
    used = {l[0] for l in L}
    bodies = [(k, n) for (k, n) in bodies if any(x in used for x in n)]
    out = 'diag.s' if DIAG else 'cdna_kernels/' + NAME + '.s'
    for a in sys.argv:
        if a.startswith('--out='): out = a.split('=')[1]
    open(out, 'w').write(build(L, bodies))
    for k, n in bodies: print(n, 'insts', len(k.out), 'regs', k.max_regs())
if __name__ == '__main__':
    main()
```
